```python
import torch

def _softmax(x, axis=-1):
    return torch.softmax(x, dim=axis)

def _gelu(x):
    return torch.nn.functional.gelu(x, approximate='tanh')

def _silu(x):
    return torch.nn.functional.silu(x)

def _sigmoid(x):
    return torch.sigmoid(x)

def _layernorm(x, axis=-1, eps=1e-05):
    m = x.mean(dim=axis, keepdim=True)
    v = x.var(dim=axis, keepdim=True, unbiased=False)
    return (x - m) / torch.sqrt(v + eps)

def _scatter_add(tgt, idx, src, axis=0):
    return tgt.clone().index_add_(axis, idx, src)

def _segment_sum(src, seg, n):
    out = torch.zeros((n,) + src.shape[1:], dtype=src.dtype)
    return out.index_add_(0, seg, src)

def _pad(x, pw):
    flat = tuple((v for pair in reversed(pw) for v in pair))
    return torch.nn.functional.pad(x, flat)
kernel_name = 'recurrent_scan__spectral_gfnet__mixer_gmlp__prompt'

def setup_inputs():

    _w = lambda a: (lambda t: t.to(torch.bfloat16) if t.is_floating_point() else t)(torch.as_tensor(a))

    def _A_setup():
        B, S, D = (1, 2048, 512)
        Df = D // 2 + 1
        return {'x': _w((lambda *s: torch.randn(*s, dtype=torch.bfloat16) * 0.05)(B, S, D)), 'w_r': _w((lambda *s: torch.randn(*s, dtype=torch.bfloat16) * 0.2)(S, Df) * 0.02), 'w_i': _w((lambda *s: torch.randn(*s, dtype=torch.bfloat16) * 0.2)(S, Df) * 0.02)}
    _A_in = _A_setup()

    def _B_setup():
        B, S, D, F = (1, 2048, 512, 1376)
        Fh = F // 2
        return {'x': _w((lambda *s: torch.randn(*s, dtype=torch.bfloat16) * 0.05)(B, S, D)), 'w_in': _w((lambda *s: torch.randn(*s, dtype=torch.bfloat16) * 0.4)(D, 2 * Fh)), 'w_sp': _w(0.01 * (lambda *s: torch.randn(*s, dtype=torch.bfloat16) * 0.4)(S, S)), 'b_sp': _w(1.0 + 0.01 * (lambda *s: torch.randn(*s, dtype=torch.bfloat16) * 0.1)(S)), 'w_out': _w((lambda *s: torch.randn(*s, dtype=torch.bfloat16) * 0.1)(Fh, D))}
    _B_in = _B_setup()
    return {'A_x': _A_in['x'], 'A_w_r': _A_in['w_r'], 'A_w_i': _A_in['w_i'], 'B_x': _B_in['x'], 'B_w_in': _B_in['w_in'], 'B_w_sp': _B_in['w_sp'], 'B_b_sp': _B_in['b_sp'], 'B_w_out': _B_in['w_out']}

def reference(A_x, A_w_r, A_w_i, B_x, B_w_in, B_w_sp, B_b_sp, B_w_out):

    def _A_ref(x, w_r, w_i):
        B, S, D = x.shape
        X = (lambda x, axes=(-2, -1): torch.fft.rfft2(x.float(), dim=axes))(x, axes=(-2, -1))
        W = w_r + 1j * w_i
        X = X * W
        y = (lambda x, s, axes=(-2, -1): torch.fft.irfft2(x, s=s, dim=axes).to(torch.bfloat16))(X, (S, D), axes=(-2, -1))
        return y

    def _B_ref(x, w_in, w_sp, b_sp, w_out):
        B, S, D = x.shape
        F = w_in.shape[-1]
        Fh = F // 2
        z = _gelu(torch.einsum('bsd,df->bsf', x, w_in))
        z1 = z[..., :Fh].clone()
        z2 = _layernorm(z[..., Fh:], axis=-1)
        g = torch.einsum('ts,bsf->btf', w_sp, z2) + b_sp[None, :, None]
        return torch.einsum('bsf,fd->bsd', z1 * g, w_out)
    x = A_x
    xn = _layernorm(x, axis=-1)
    s = _A_ref(xn, A_w_r, A_w_i)
    g = _silu(_B_ref(xn, B_w_in, B_w_sp, B_b_sp, B_w_out))
    return x + s * g
```

```python
from dsl import *
import math
WS_Z1   = 0x000000
WS_Z2   = 0x300000
WS_T    = 0x600000
WS_U    = 0x800000
WS_H    = 0xA00000
WS_STAT = 0xD00000
WS_FLAG = 0xE00000
WS_SIZE = 0x1000000
sX, sWIN, sWS, sWSP, sWR, sWI, sBSP, sWOUT, sOUT = [f's[{8+4*i}:{11+4*i}]' for i in range(9)]
SW = 's44'
SN = 's45'
def f2u(x):
    import struct
    return struct.unpack('<I', struct.pack('<f', x))[0]
def hx(x): return hex(f2u(x))

def prologue(a, name, endlabel, exitlabel):
    a(f'.globl {name}\n.p2align 8\n.type {name},@function\n{name}:')
    a(f's_cmp_ge_u32 s2, 256\ns_cbranch_scc1 {exitlabel}')
    a('s_load_dwordx16 s[64:79], s[0:1], 0\ns_load_dwordx4 s[80:83], s[0:1], 64\ns_load_dwordx2 s[84:85], s[0:1], 80')
    a(f's_getpc_b64 s[4:5]\nL_soft_pc_{name}:')
    a(f's_lshr_b32 s3, s2, 3\ns_mul_i32 s3, s3, (({endlabel}-L_soft_pc_{name})/32+127)/128*128')
    a(f'v_and_b32 v1, 63, v0\nv_lshrrev_b32 v2, 6, v0')
    a(f'v_min_u32 v3, (({endlabel}-L_soft_pc_{name})/32+127)/128-1, v0\nv_lshlrev_b32 v3, 7, v3\nv_add_u32 v3, s3, v3')
    a(f'v_min_u32 v3, {endlabel}-L_soft_pc_{name}-4, v3')
    a(f'v_readfirstlane_b32 {SW}, v2')
    a('global_load_dword v3, v3, s[4:5]')
    a('s_waitcnt lgkmcnt(0)')
    sizes = [2097152, 512*1376*2, WS_SIZE, 2048*2048*2, 2048*257*2, 2048*257*2, 4096, 688*512*2, 2097152]
    ptrs  = [64, 72, 84, 74, 66, 68, 76, 78, 80]
    for i,(sz,p) in enumerate(zip(sizes,ptrs)):
        b = 8+4*i
        a(f's_mov_b32 s{b}, s{p}\ns_mov_b32 s{b+1}, s{p+1}\ns_mov_b32 s{b+2}, {sz}\ns_mov_b32 s{b+3}, 0x00020000')

def vr(b, n=4): return f'v[{b}:{b+n-1}]'

KD = '''.p2align 6
.amdhsa_kernel {name}
  .amdhsa_next_free_vgpr 256
  .amdhsa_next_free_sgpr 102
  .amdhsa_accum_offset 256
  .amdhsa_group_segment_fixed_size 0
  .amdhsa_kernarg_size 88
  .amdhsa_user_sgpr_count 2
  .amdhsa_user_sgpr_kernarg_segment_ptr 1
  .amdhsa_system_sgpr_workgroup_id_x 1
.end_amdhsa_kernel
'''
```

```python
import re

REG = re.compile(r'(?<![\w.])(-?)(?:abs\()?([vas])(?:(\d+)|\[(\d+):(\d+)\])(?![\w])')
TRANS = ('v_exp_f32','v_log_f32','v_rcp_f32','v_rsq_f32','v_sqrt_f32','v_sin_f32','v_cos_f32')

def regs_of(tok):
    out = set()
    for m in REG.finditer(tok):
        k = m.group(2)
        if m.group(3) is not None: out.add((k,int(m.group(3))))
        else:
            for i in range(int(m.group(4)), int(m.group(5))+1): out.add((k,i))
    t = tok.strip()
    if re.search(r'\bvcc\b', t): out.add(('s','vcc'))
    if re.search(r'\bexec\b', t): out.add(('s','exec'))
    if re.search(r'\bm0\b', t): out.add(('s','m0'))
    return out

class I:
    __slots__ = ('text','op','kind','defs','uses','tag','wait','passes','srcc','sdata','label')
    def __init__(s, text, tag=None):
        s.text = text; s.tag = tag; s.wait = None; s.passes = 0; s.srcc=set(); s.sdata=set(); s.label=None
        t = text.split(';')[0].strip()
        s.defs=set(); s.uses=set()
        if t.endswith(':'):
            s.kind='label'; s.op=''; s.label=t[:-1]; return
        if t.startswith('.') or t=='':
            s.kind='dir'; s.op=''; return
        parts = t.split(None,1); op = parts[0]; s.op = op
        rest = parts[1] if len(parts)>1 else ''
        ops=[]; cur=''; d=0
        for ch in rest:
            if ch=='[': d+=1
            if ch==']': d-=1
            if ch==',' and d==0: ops.append(cur); cur=''
            else: cur+=ch
        if cur.strip(): ops.append(cur)
        R = [regs_of(o.strip().split(' op_sel')[0]) for o in ops]
        if op.startswith('v_mfma'):
            s.kind='mfma'; s.defs=R[0]; s.uses=R[1]|R[2]|R[3]; s.srcc=R[3]
            s.passes = 8 if '32x32x16' in op else 4
        elif op.startswith('v_'):
            s.kind='valu'
            if op.startswith('v_cmp'):
                s.defs=R[0]; s.uses=set().union(*R[1:])
            elif op.startswith('v_permlane') and 'swap' in op:
                s.defs=R[0]|R[1]; s.uses=R[0]|R[1]
            elif op in ('v_add_co_u32','v_sub_co_u32','v_addc_co_u32'):
                s.defs=R[0]|R[1]; s.uses=set().union(*R[2:])
            else:
                s.defs=R[0]; s.uses=set().union(*R[1:]) if len(R)>1 else set()
                if op.startswith(('v_fmac','v_dot2c','v_writelane')) or '_dpp' in op or 'quad_perm' in t or 'row_' in t: s.uses |= R[0]
        elif op.startswith('ds_'):
            s.kind='ds'
            if op.startswith(('ds_read','ds_bpermute','ds_permute','ds_swizzle')): s.defs=R[0]; s.uses=set().union(*R[1:])
            else: s.uses=set().union(*R)
        elif op.startswith(('buffer_','global_')):
            s.kind='vmem'
            lds = bool(re.search(r'\blds\b', t)) or 'load_lds' in op
            if 'load' in op and not lds:
                s.defs=R[0]; s.uses=set().union(*R[1:])
                if 'd16' in op: s.uses |= R[0]
            elif 'atomic' in op and re.search(r'\bsc0\b', t):
                s.defs=R[0]; s.uses=set().union(*R)
            else:
                s.uses=set().union(*R) if R else set()
                if lds: s.uses.add(('s','m0'))
                if 'store' in op and ('x4' in op or 'x3' in op):
                    s.sdata = R[0] if op.startswith('buffer_') else R[1]
        elif op.startswith('s_'):
            if op.startswith(('s_load','s_memtime','s_memrealtime','s_buffer_load')):
                s.kind='smem'; s.defs=R[0]; s.uses=set().union(*R[1:]) if len(R)>1 else set()
            elif op.startswith(('s_cbranch','s_branch','s_endpgm','s_setpc')):
                s.kind='branch'
            elif op.startswith(('s_waitcnt','s_nop','s_barrier','s_sleep','s_setprio')):
                s.kind='misc'
            elif op.startswith('s_cmp') or op.startswith('s_bitcmp'):
                s.kind='salu'; s.uses=set().union(*R)
            else:
                s.kind='salu'; s.defs=R[0] if R else set(); s.uses=set().union(*R[1:]) if len(R)>1 else set()
                if 'saveexec' in op: s.defs = s.defs | {('s','exec')}
        else:
            raise ValueError('unknown instr '+t)

class Asm:
    def __init__(s): s.L=[]
    def __call__(s, text, tag=None):
        last=None
        for line in text.split('\n'):
            if line.strip()=='' : continue
            last=I(line.strip()); s.L.append(last)
        if tag is not None: last.tag=tag
        return last
    def wait(s, vm=None, lgkm=None):
        i=I('s_waitcnt'); i.wait=(vm,lgkm); s.L.append(i); return i
    def extend(s, lst): s.L.extend(lst)
    def sub(s): return Asm()

def interleave(main, fill, pos):
    out=[]; j=0
    for k,m in enumerate(main):
        out.append(m)
        n=pos(k,m)
        out.extend(fill[j:j+n]); j+=n
    out.extend(fill[j:])
    return out

def resolve_waits(L):
    for n,ins in enumerate(L):
        if ins.wait is None: continue
        vm,lg = ins.wait; parts=[]
        for tag,kind,mx,nm in ((vm,'vmem',63,'vmcnt'),(lg,'ds',15,'lgkmcnt')):
            if tag is None: continue
            if tag==0: parts.append(f'{nm}(0)'); continue
            cnt=0; found=False
            for p in range(n-1,-1,-1):
                q=L[p]
                if q.tag==tag: found=True; break
                if q.kind==kind: cnt+=1
                if kind=='ds' and q.kind=='smem' and 'time' not in q.op: raise ValueError('smem between ds tag and wait')
                if q.kind=='label' and not q.label.startswith('L_soft'): raise ValueError(f'label {q.label} between tag {tag} and its wait')
            if not found: raise ValueError(f'tag {tag} not found')
            parts.append(f'{nm}({min(cnt,mx)})')
        ins.text='s_waitcnt '+' '.join(parts)

def states(ins):
    if ins.kind in ('label','dir'): return 0
    if ins.op=='s_nop': return int(ins.text.split()[1])+1
    return 1

def need(p, c):
    n=0
    vdefs = {r for r in p.defs if r[0] in 'va'}
    if p.kind=='valu':
        if c.kind=='mfma' and vdefs & c.uses: n=max(n,2)
        if c.kind=='valu':
            if c.op.startswith('v_permlane') and vdefs & c.uses: n=max(n,2)
            if ('dpp' in c.text or 'quad_perm' in c.text or 'row_' in c.text) and vdefs & c.uses: n=max(n,2)
            if c.op.startswith(('v_readlane','v_readfirstlane')) and vdefs & c.uses: n=max(n,1)
            if p.op.split('_e')[0] in TRANS and vdefs & c.uses: n=max(n,1)
            if ('sdwa' in p.text or 'op_sel' in p.text) and vdefs & (c.uses|c.defs): n=max(n,1)
        if p.op.startswith('v_dot') and c.kind in ('valu','mfma','ds','vmem'):
            if c.op==p.op:
                if vdefs & (c.uses-c.defs): n=max(n,3)
            elif vdefs & (c.uses|c.defs): n=max(n,3)
        sdefs = {r for r in p.defs if r[0]=='s'}
        if sdefs:
            if c.kind=='vmem' and sdefs & c.uses: n=max(n,5)
            if c.kind=='valu' and sdefs & c.uses: n=max(n,4 if c.op.startswith(('v_readlane','v_writelane')) else 2)
            if c.kind=='salu' and sdefs & c.uses: n=max(n,1)
    if p.kind=='mfma':
        d = 8 if p.passes==4 else 12
        if c.kind=='mfma':
            ab = c.uses - c.srcc
            if p.defs & ab: n=max(n,d)
            elif p.defs & c.srcc:
                if not (p.defs==c.srcc and p.passes==c.passes): n=max(n, 6 if p.passes==4 else 10)
            elif p.defs & c.defs: n=max(n,d)
        elif c.kind in ('valu','ds','vmem'):
            if p.defs & (c.uses|c.defs): n=max(n,d)
            if c.kind=='valu' and p.srcc & c.defs: n=max(n, 3 if p.passes==4 else 7)
    if p.kind=='salu' and ('s','m0') in p.defs and c.kind=='vmem' and ('s','m0') in c.uses: n=max(n,1)
    if p.kind=='salu' and ('s','exec') in p.defs and c.kind=='valu' and ('dpp' in c.text): n=max(n,0)
    if p.kind=='vmem' and p.sdata and c.kind in ('valu','mfma','ds','vmem') and p.sdata & c.defs: n=max(n,2)
    return n

def pad_hazards(L):
    out=[]; added=0
    for ins in L:
        if ins.kind in ('label','dir'):
            out.append(ins); continue
        req=0; dist=0
        for p in reversed(out):
            if dist>=20: break
            if p.kind in ('label','dir'): continue
            if ins.kind=='branch' and not ins.op.startswith('s_endpgm'):
                w = 0
                if p.kind=='mfma': w = 8 if p.passes==4 else 12
                elif p.kind=='valu': w = 5 if any(r[0]=='s' for r in p.defs) else 2
                elif p.kind=='vmem' and p.sdata: w=2
                r = w-1-dist
            else:
                r = need(p,ins)-dist
            req=max(req,r)
            dist+=states(p)
        while req>0:
            k=min(req,16); out.append(I(f's_nop {k-1}')); req-=k; added+=k
        out.append(ins)
    return out, added

def check_loads(L):
    vm=[]; lg=[]; errs=[]
    for n,ins in enumerate(L):
        if ins.kind in ('label','dir'): continue
        if ins.op=='s_waitcnt':
            m=re.search(r'vmcnt\((\d+)\)',ins.text)
            if m: k=int(m.group(1)); vm=vm[len(vm)-k:] if k<len(vm) else vm; vm = vm if k>0 else []
            m=re.search(r'lgkmcnt\((\d+)\)',ins.text)
            if m:
                k=int(m.group(1))
                if k==0: lg=[]
                elif not any(q.kind=='smem' for q in lg): lg=lg[len(lg)-k:] if k<len(lg) else lg
            continue
        touched = ins.uses|ins.defs
        for q in vm+lg:
            if q.defs & touched and not ('d16' in q.op and 'd16' in ins.op):
                errs.append(f'{n}: "{ins.text}" touches dest of outstanding "{q.text}"')
        if ins.kind=='vmem': vm.append(ins)
        if ins.kind in ('ds','smem') and 'time' not in ins.op: lg.append(ins)
        if ins.op in ('s_branch','s_endpgm'): vm=[]; lg=[]
    return errs

def render(L):
    resolve_waits(L)
    errs = check_loads(L)
    if errs: raise ValueError('load-use errors:\n'+'\n'.join(errs[:20]))
    L2,added = pad_hazards(L)
    txt=[]
    for i in L2:
        txt.append(i.text if i.kind in ('label','dir') else '    '+i.text)
    return '\n'.join(txt)+'\n', added
```

```python
from common import *
SLOT = 16384
MISC = 147456
LST, LCS, LCF, LZ, LRR = MISC, MISC+4096, MISC+8192, MISC+10240, MISC+12288
C0 = -2*0.7978845608028654*1.4426950408889634
C1 = C0*0.044715

def x_dma_setup(a, rowstride_shift):
    a(f'v_lshrrev_b32 v5, 4, v1\ns_lshl_b32 s3, {SW}, 2\nv_add_u32 v5, s3, v5')
    a('v_xor_b32 v6, v5, v1\nv_and_b32 v6, 15, v6\nv_lshlrev_b32 v6, 4, v6')
    a(f'v_lshlrev_b32 v4, {rowstride_shift}, v5\nv_add_u32 v4, v4, v6')

def x_dma(a, q, ldsbase, tilestride, tag):
    for i in range(4):
        a(f's_add_u32 m0, s51, {ldsbase + i*8192}')
        a(f's_add_u32 s3, s50, {i*tilestride + q*256}')
        a(f'buffer_load_dwordx4 v4, {sX}, s3 offen lds', tag=(tag if i==3 else None))

def w_dma(a, pas, c, ldsbase, tag):
    for e in range(2):
        a(f's_add_u32 m0, s51, {ldsbase + e*8192}')
        a(f's_add_u32 s3, {"s52" if pas==1 else "s53"}, {(128*c + 64*e)*2752}')
        a(f'buffer_load_dwordx4 {"v7" if pas==1 else "v8"}, {sWIN}, s3 offen lds', tag=(tag if e==1 else None))

def gelu(a, acc, n, cs, vm, vA, vB, vRi, t0):
    G = 4
    for b in range(0, n, G):
        for i in range(G): a(f'v_fma_f32 v{acc+b+i}, -v{vm}, v{cs+b+i}, v{acc+b+i}')
        for i in range(G): a(f'v_mul_f32 v{t0+i}, v{acc+b+i}, v{acc+b+i}')
        for i in range(G): a(f'v_fma_f32 v{t0+i}, v{t0+i}, v{vB}, v{vA}')
        for i in range(G): a(f'v_mul_f32 v{t0+i}, v{t0+i}, v{acc+b+i}')
        for i in range(G): a(f'v_exp_f32 v{t0+i}, v{t0+i}')
        for i in range(G): a(f'v_fma_f32 v{t0+i}, v{t0+i}, v{vRi}, v{vRi}')
        for i in range(G): a(f'v_rcp_f32 v{t0+i}, v{t0+i}')
        for i in range(G): a(f'v_mul_f32 v{acc+b+i}, v{acc+b+i}, v{t0+i}')

def p1_gemm(a, multi):
    X, ACC2, ACC1, WF, ID, CS = 128, 96, 112, 64, 80, 48
    a(f's_lshl_b32 s51, {SW}, 10\ns_lshl_b32 s50, s46, 17')
    x_dma_setup(a, 10)
    a('v_lshrrev_b32 v5, 2, v1\nv_and_b32 v5, 4, v5\nv_and_b32 v6, 7, v1\nv_xor_b32 v6, v5, v6')
    a('v_lshrrev_b32 v5, 3, v1\nv_mul_u32_u24 v5, 2752, v5\nv_lshl_add_u32 v8, v6, 4, v5')
    a('s_cmp_eq_u32 s47, 0\ns_cselect_b32 s3, 2, 0\nv_cmp_gt_u32 vcc, s3, v6\nv_mov_b32 v5, 0x40000000\nv_cndmask_b32 v7, v8, v5, vcc')
    a(f's_mul_i32 s3, {SW}, {8*2752}\ns_lshl_b32 s53, s47, 7\ns_add_u32 s53, s53, s3\ns_add_u32 s52, s53, 1344')
    xs = [0, 3*SLOT, 6*SLOT, 0]; w1s = [2*SLOT, 5*SLOT, 8*SLOT, 2*SLOT]; w2s = [3*SLOT, 4*SLOT, 5*SLOT, 6*SLOT]
    for q in range(3):
        x_dma(a, q, xs[q], 32768, None); w_dma(a, 1, q, w1s[q], f'q{q}')
    if multi:
        a(f's_lshl_b32 s3, s46, 8\ns_add_u32 s54, s3, {WS_FLAG}\nv_mov_b32 v9, 0\nbuffer_load_dword v46, v9, {sWS}, s54 offen sc1', tag='epoch')
    a('v_and_b32 v10, 31, v1\nv_lshrrev_b32 v11, 5, v1')
    a('v_and_b32 v5, 0x13, v10\nv_lshrrev_b32 v6, 1, v10\nv_and_b32 v6, 4, v6\nv_or_b32 v5, v5, v6\nv_lshlrev_b32 v6, 1, v10\nv_and_b32 v6, 8, v6\nv_or_b32 v5, v5, v6')
    a(f's_and_b32 s48, {SW}, 3\ns_lshr_b32 s49, {SW}, 2')
    a(f'v_and_b32 v6, 15, v5\nv_xor_b32 v6, v6, v11\ns_lshl_b32 s3, {SW}, 1\nv_xor_b32 v6, s3, v6\nv_lshlrev_b32 v6, 4, v6')
    a('s_lshl_b32 s3, s48, 13\nv_lshl_add_u32 v12, v5, 8, v6\nv_add_u32 v12, s3, v12')
    a('v_and_b32 v5, 15, v1\nv_lshrrev_b32 v6, 2, v5\nv_lshl_add_u32 v6, v11, 3, v6\nv_lshlrev_b32 v13, 7, v6')
    a('v_bfe_u32 v6, v1, 4, 1\nv_lshlrev_b32 v6, 1, v6\nv_bfe_u32 v9, v1, 1, 1\nv_or_b32 v6, v6, v9\ns_lshl_b32 s3, s49, 2\nv_or_b32 v6, s3, v6')
    a('v_bfe_u32 v9, v1, 3, 1\nv_lshlrev_b32 v9, 2, v9\nv_xor_b32 v6, v6, v9\nv_lshl_add_u32 v13, v6, 4, v13')
    a(f'v_and_b32 v6, 1, v1\nv_lshl_add_u32 v13, v6, 3, v13\ns_lshl_b32 s3, {SW}, 11\nv_add_u32 v13, s3, v13')
    a('v_lshlrev_b32 v5, 2, v11\nv_sub_u32 v5, v10, v5\nv_mov_b32 v6, 0x3f80\nv_mov_b32 v9, 0x3f800000')
    for u in range(2):
        for jj in range(4):
            off = 16*u + (0,2,8,10)[jj]
            a(f'v_cmp_eq_u32 vcc, {off}, v5\nv_cndmask_b32 v{ID+4*u+jj}, 0, v6, vcc\nv_cmp_eq_u32 vcc, {off+1}, v5\nv_cndmask_b32 v{ID+4*u+jj}, v{ID+4*u+jj}, v9, vcc')
    a('s_mov_b32 s55, 0x3f803f80')
    for r in (14,15,16,17,18,19): a(f'v_mov_b32 v{r}, 0')
    def quarter(pas, q, xb, wb, acc, first):
        a(f'v_add_u32 v21, {wb}, v13')
        if pas==1:
            a(f'v_add_u32 v20, {xb}, v12')
            for js in range(8):
                a(f'v_xor_b32 v{22+(js&1)}, {32*js}, v20\nds_read_b128 {vr(X+4*(8*q+js))}, v{22+(js&1)}', tag=f'x{q}_{js}')
        def rd(js):
            f = WF+4*(js&3)
            a(f'v_xor_b32 v{24+(js&1)}, {2048*js}, v21')
            a(f'ds_read_b64_tr_b16 {vr(f,2)}, v{24+(js&1)}\nds_read_b64_tr_b16 {vr(f+2,2)}, v{24+(js&1)} offset:512', tag=f'w{pas}{q}_{js}')
        for js in range(3): rd(js)
        for js in range(8):
            if js+3 < 8: rd(js+3)
            a.wait(lgkm=f'w{pas}{q}_{js}')
            f = WF+4*(js&3)
            a(f'v_mfma_f32_32x32x16_bf16 {vr(acc,16)}, {vr(f)}, {vr(X+4*(8*q+js))}, {"0" if first and js==0 else vr(acc,16)}')
            if js in (0,4):
                for r in range(4): a(f'v_dot2c_f32_bf16 v{17+pas}, s55, v{f+r}')
        if pas==1:
            for js in range(4):
                for r in range(4):
                    x = X+4*(8*q+js)+r
                    a(f'v_dot2c_f32_bf16 v{14+(r&1)}, s55, v{x}\nv_dot2c_f32_bf16 v{16+0*(r&1)}, v{x}, v{x}')
    for q in range(4):
        a.wait(vm=f'q{q}'); a('s_barrier')
        if q==1: x_dma(a, 3, xs[3], 32768, None); w_dma(a, 1, 3, w1s[3], 'q3')
        if q==2:
            for c in range(3): w_dma(a, 2, c, w2s[c], f'r{c}')
        if q==3: w_dma(a, 2, 3, w2s[3], 'r3')
        quarter(1, q, xs[q], w1s[q], ACC2, q==0)
    a('v_add_f32 v14, v14, v15\nv_mov_b32 v15, v16')
    a(f's_lshl_b32 s3, s48, 10\ns_lshl_b32 s4, s49, 4\ns_add_u32 s3, s3, s4\ns_add_u32 s3, s3, {LST}')
    a('v_lshlrev_b32 v5, 5, v10\nv_lshl_add_u32 v5, v11, 3, v5\nv_add_u32 v26, s3, v5\nds_write_b64 v26, v[14:15]')
    a(f's_lshl_b32 s3, s49, 10\ns_lshl_b32 s4, s48, 3\ns_add_u32 s3, s3, s4\ns_add_u32 s3, s3, {LCS}')
    a('v_lshlrev_b32 v5, 5, v10\nv_lshl_add_u32 v5, v11, 2, v5\nv_add_u32 v27, s3, v5\nds_write_b32 v27, v18')
    for q in range(4):
        a.wait(vm=f'r{q}', lgkm=0); a('s_barrier')
        quarter(2, q, None, w2s[q], ACC1, q==0)
    a('ds_write_b32 v27, v19 offset:2048')
    a(f's_lshl_b32 s3, s48, 10\ns_add_u32 s3, s3, {LST}\nv_lshlrev_b32 v5, 5, v10\nv_add_u32 v5, s3, v5')
    a('ds_read_b128 v[28:31], v5\nds_read_b128 v[32:35], v5 offset:16')
    a.wait(lgkm=0); a('s_barrier')
    a('v_add_f32 v28, v28, v30\nv_add_f32 v29, v29, v31\nv_add_f32 v32, v32, v34\nv_add_f32 v33, v33, v35\nv_add_f32 v28, v28, v32\nv_add_f32 v29, v29, v33')
    a(f'v_mul_f32 v14, {hx(1/512)}, v28\nv_mul_f32 v29, {hx(1/512)}, v29\nv_fma_f32 v29, -v14, v14, v29\nv_add_f32 v29, {hx(1e-5)}, v29')
    a(f'v_rsq_f32 v15, v29\nv_sqrt_f32 v16, v29')
    a(f'v_mul_f32 v17, {hx(C0)}, v15\nv_mul_f32 v18, v15, v15\nv_mul_f32 v18, v18, v15\nv_mul_f32 v18, {hx(C1)}, v18')
    def cs_final(pas):
        a(f's_lshl_b32 s3, s49, 10\ns_add_u32 s3, s3, {LCS + (pas-1)*2048}\nv_lshlrev_b32 v5, 5, v10\nv_lshl_add_u32 v5, v11, 4, v5\nv_add_u32 v5, s3, v5')
        a('ds_read_b128 v[28:31], v5'); a.wait(lgkm=0)
        a('v_add_f32 v28, v28, v29\nv_add_f32 v30, v30, v31\nv_add_f32 v28, v28, v30\nv_mov_b32 v29, v28\nv_permlane32_swap_b32 v28, v29\nv_add_f32 v28, v28, v29')
        a(f's_lshl_b32 s3, {SW}, 7\ns_add_u32 s3, s3, {LCF + (pas-1)*1024}\nv_lshl_add_u32 v5, v10, 2, s3\nds_write_b32 v5, v28')
        a('v_lshl_add_u32 v5, v11, 4, s3'); a.wait(lgkm=0)
        for g in range(4): a(f'ds_read_b128 {vr(CS+4*g)}, v5 offset:{32*g}')
        a.wait(lgkm=0)
    cs_final(1)
    gelu(a, ACC2, 16, CS, 14, 17, 18, 16, 28)
    a(f'v_add_f32 v28, v{ACC2}, v{ACC2+1}\nv_mul_f32 v29, v{ACC2}, v{ACC2}\nv_fmac_f32 v29, v{ACC2+1}, v{ACC2+1}')
    for v in range(2,16): a(f'v_add_f32 v28, v28, v{ACC2+v}\nv_fmac_f32 v29, v{ACC2+v}, v{ACC2+v}')
    a('v_mov_b32 v30, v28\nv_mov_b32 v31, v29\nv_permlane32_swap_b32 v28, v30\nv_permlane32_swap_b32 v29, v31\nv_add_f32 v28, v28, v30\nv_add_f32 v29, v29, v31')
    a(f's_lshl_b32 s3, s48, 9\ns_add_u32 s3, s3, {LZ}\nv_lshl_add_u32 v5, v10, 4, s3\ns_lshl_b32 s4, s49, 3\nv_add_u32 v6, s4, v5\nds_write_b64 v6, v[28:29]')
    if multi:
        a.wait(vm='epoch')
        a(f'v_readfirstlane_b32 s3, v46\ns_mul_i32 s3, s3, 0x9E3779B1\ns_add_u32 {SN}, s3, 0x7F4A7C15')
    a.wait(lgkm=0); a('s_barrier')
    a('ds_read_b128 v[28:31], v5'); a.wait(lgkm=0)
    a(f'v_add_f32 v28, v28, v30\nv_add_f32 v30, v29, v31\nv_mov_b32 v29, {SN}\nv_mov_b32 v31, {SN}')
    a(f's_mul_i32 s56, s46, {11*2048}\ns_lshl_b32 s3, s48, 9\ns_add_u32 s56, s56, s3\ns_add_u32 s56, s56, {WS_STAT}')
    a('s_lshl_b32 s3, s47, 11\ns_add_u32 s3, s3, s56\ns_lshl_b32 s4, s49, 30\ns_add_u32 s3, s3, s4')
    a('v_lshlrev_b32 v5, 4, v10\nv_lshl_add_u32 v6, v11, 30, v5')
    a(f'buffer_store_dwordx4 v[28:31], v6, {sWS}, s3 offen sc1')
    cs_final(2)
    gelu(a, ACC1, 16, CS, 14, 17, 18, 16, 28)
    for u in range(2):
        for jj in range(4): a(f'v_cvt_pk_bf16_f32 v{WF+4*u+jj}, v{ACC1+8*u+2*jj}, v{ACC1+8*u+2*jj+1}')
    a(f'v_mfma_f32_32x32x16_bf16 {vr(ACC1,16)}, {vr(WF)}, {vr(ID)}, 0\nv_mfma_f32_32x32x16_bf16 {vr(ACC1,16)}, {vr(WF+4)}, {vr(ID+4)}, {vr(ACC1,16)}')
    a(f's_lshl_b32 s3, s46, 2\ns_add_u32 s3, s3, s48\ns_mul_i32 s57, s3, {32*1408}\ns_lshl_b32 s3, s47, 7\ns_add_u32 s57, s57, s3\ns_lshl_b32 s3, s49, 6\ns_add_u32 s57, s57, s3')
    a(f'v_mul_u32_u24 v5, {8*1408}, v11\nv_lshl_add_u32 v5, v10, 1, v5')
    for v in range(16):
        row = 16*(v>>3) + 4*((v>>2)&1) + (v&3)
        a(f's_add_u32 s3, s57, {WS_Z1 + row*1408}\nbuffer_store_short_d16_hi v{ACC1+v}, v5, {sWS}, s3 offen sc1')
    a('v_lshlrev_b32 v5, 4, v10\nv_lshl_add_u32 v6, v11, 11, v5\ns_mov_b32 s58, 0')
    P = X
    a('L_p1_poll:')
    for i in range(6):
        a(f's_add_u32 s3, s56, {i*4096}\nbuffer_load_dwordx4 {vr(P+4*i)}, {"v6" if i<5 else "v5"}, {sWS}, s3 offen sc1')
    a('s_waitcnt vmcnt(0)')
    a(f'v_xor_b32 v28, {SN}, v{P+1}')
    for i in range(1,12): a(f'v_xor_b32 v29, {SN}, v{P+1+2*i}\nv_or_b32 v28, v28, v29')
    a('v_cmp_ne_u32 vcc, 0, v28\ns_add_u32 s58, s58, 1\ns_cmp_gt_u32 s58, 4000\ns_cbranch_scc1 L_p1_got\ns_cbranch_vccnz L_p1_poll')
    a('L_p1_got:')
    a(f'v_cmp_eq_u32 vcc, 0, v11\nv_cndmask_b32 v28, 0, v{P+20}, vcc\nv_cndmask_b32 v29, 0, v{P+22}, vcc')
    for i in range(5): a(f'v_add_f32 v28, v28, v{P+4*i}\nv_add_f32 v29, v29, v{P+4*i+2}')
    a('v_mov_b32 v30, v28\nv_mov_b32 v31, v29\nv_permlane32_swap_b32 v28, v30\nv_permlane32_swap_b32 v29, v31\nv_add_f32 v28, v28, v30\nv_add_f32 v29, v29, v31')
    a(f'v_mul_f32 v28, {hx(1/688)}, v28\nv_mul_f32 v29, {hx(1/688)}, v29\nv_fma_f32 v29, -v28, v28, v29\nv_add_f32 v29, {hx(1e-5)}, v29\nv_rsq_f32 v29, v29\nv_mul_f32 v28, v28, v29')
    for v in range(16): a(f'v_fma_f32 v{ACC2+v}, v{ACC2+v}, v29, -v28')
    for u in range(2):
        for jj in range(4): a(f'v_cvt_pk_bf16_f32 v{WF+4*u+jj}, v{ACC2+8*u+2*jj}, v{ACC2+8*u+2*jj+1}')
    a(f'v_mfma_f32_32x32x16_bf16 {vr(ACC2,16)}, {vr(WF)}, {vr(ID)}, 0\nv_mfma_f32_32x32x16_bf16 {vr(ACC2,16)}, {vr(WF+4)}, {vr(ID+4)}, {vr(ACC2,16)}')
    a(f's_lshl_b32 s3, s47, 2\ns_lshl_b32 s4, s49, 1\ns_add_u32 s3, s3, s4\ns_lshl_b32 s3, s3, 16\ns_lshl_b32 s4, s46, 2\ns_add_u32 s4, s4, s48\ns_lshl_b32 s4, s4, 10\ns_add_u32 s3, s3, s4\ns_add_u32 s3, s3, {WS_Z2}')
    a('v_lshrrev_b32 v5, 4, v10\nv_lshlrev_b32 v5, 16, v5\nv_and_b32 v6, 15, v1\nv_lshl_add_u32 v6, v11, 4, v6\nv_lshl_add_u32 v5, v6, 4, v5')
    s_perm = 's59'
    a(f's_mov_b32 {s_perm}, 0x07060302')
    for e in range(2):
        for jj in range(4): a(f'v_perm_b32 v{WF+4*e+jj}, v{ACC2+8*e+2*jj+1}, v{ACC2+8*e+2*jj}, {s_perm}')
        a(f'buffer_store_dwordx4 {vr(WF+4*e)}, v5, {sWS}, s3 offen offset:{512*e} sc1')
    if multi:
        a(f's_cmp_lg_u32 s47, 0\ns_cbranch_scc1 L_p1_noep\ns_cmp_lg_u32 {SW}, 0\ns_cbranch_scc1 L_p1_noep')
        a(f'v_mov_b32 v6, {SN}\nv_lshlrev_b32 v9, 30, v1\nv_min_u32 v5, 1, v1\nv_lshlrev_b32 v5, 30, v5\nbuffer_store_dword v6, v5, {sWS}, s54 offen sc1')
        a('L_p1_noep:')

def p1_dft(a):
    ACC_C, ACC_S, ST, FR, XF, G = 96, 112, 128, 160, 192, 64
    a(f's_lshl_b32 s51, {SW}, 10\ns_lshl_b32 s50, s46, 12')
    x_dma_setup(a, 16)
    for q in (0,2,1,3): x_dma(a, q, q*32768, 1024, f'dq{q}')
    a(f's_and_b32 s48, {SW}, 3\ns_lshr_b32 s49, {SW}, 2')
    a('v_and_b32 v10, 31, v1\nv_lshrrev_b32 v11, 5, v1')
    a('s_lshl_b32 s52, s47, 1\ns_add_u32 s52, s52, s49')
    a('s_lshl_b32 s53, s46, 2\ns_add_u32 s53, s53, s48')
    a('s_lshl_b32 s3, s52, 5\ns_add_u32 s3, s3, 1\nv_add_u32 v14, s3, v10')
    a('v_and_b32 v6, 15, v10\nv_xor_b32 v6, v6, v11\nv_lshlrev_b32 v6, 4, v6\nv_lshl_add_u32 v12, v10, 8, v6\ns_lshl_b32 s3, s48, 13\nv_add_u32 v12, s3, v12')
    a('s_lshl_b32 s3, s49, 16\nv_add_u32 v12, s3, v12\nv_xor_b32 v13, 0x10000, v12')
    a('s_lshl_b32 s3, s49, 9\ns_add_u32 s3, s3, 1\nv_lshl_add_u32 v5, v11, 4, s3\nv_mul_u32_u24 v5, v5, v14\nv_lshlrev_b32 v6, 1, v14\nv_lshlrev_b32 v7, 5, v14')
    for i in range(8):
        a(f'v_and_b32 v8, 1023, v5\nv_cvt_f32_u32 v8, v8\nv_mul_f32 v8, {hx(1/1024)}, v8\nv_cos_f32 v{ST+i}, v8\nv_sin_f32 v{ST+16+i}, v8')
        a(f'v_sub_u32 v9, v5, v7\nv_and_b32 v9, 1023, v9\nv_cvt_f32_u32 v9, v9\nv_mul_f32 v9, {hx(1/1024)}, v9\nv_cos_f32 v{ST+8+i}, v9\nv_sin_f32 v{ST+24+i}, v9')
        if i<7: a('v_add_u32 v5, v5, v6')
    a(f'v_and_b32 v8, 31, v14\nv_cvt_f32_u32 v8, v8\nv_mul_f32 v8, {hx(1/32)}, v8\nv_cos_f32 v15, v8\nv_add_f32 v15, v15, v15')
    a('v_and_b32 v16, 1, v14\nv_mul_u32_u24 v16, 0x8000, v16\nv_lshl_or_b32 v16, v16, 16, v16')
    a('v_lshlrev_b32 v5, 8, v11\nv_add_u32 v5, s53, v5\nv_mul_u32_u24 v5, v5, v10\nv_lshlrev_b32 v6, 6, v10')
    for u in range(2):
        for jj in range(4):
            for e in range(2):
                i = 2*jj+e; aoff = 8*(2*u+(i>>2)) + (i&3)
                a(f'v_mad_u32_u24 v8, v6, {aoff}, v5\nv_and_b32 v8, 2047, v8\nv_cvt_f32_u32 v8, v8\nv_mul_f32 v8, {hx(1/2048)}, v8\nv_cos_f32 v{20+e}, v8\nv_sin_f32 v{22+e}, v8')
            a(f'v_cvt_pk_bf16_f32 v{G+4*u+jj}, v20, v21\nv_cvt_pk_bf16_f32 v{G+8+4*u+jj}, v22, v23\nv_cvt_pk_bf16_f32 v{G+16+4*u+jj}, -v22, -v23')
    a('s_mov_b32 s55, 0x3f803f80\nv_mov_b32 v17, 0\nv_mov_b32 v18, 0\nv_mov_b32 v19, 0')
    cur, prev = 0, 8
    def rd(j):
        b = XF + 8*(j&3); o = 32768*(j>>3)
        a(f'v_xor_b32 v24, {32*(j&7)}, v12\nv_xor_b32 v25, {32*(j&7)}, v13')
        a(f'ds_read_b128 {vr(b)}, v24 offset:{o}\nds_read_b128 {vr(b+4)}, v25 offset:{o}', tag=f'dx{j}')
    for j in range(16):
        if j in (0,8):
            a.wait(vm='dq2' if j==0 else 'dq3'); a('s_barrier')
            rd(j); rd(j+1)
        if (j&7) < 6: rd(j+2)
        f = FR + 16*(j&1)
        for jj in range(4):
            a(f'v_cvt_pk_bf16_f32 v{f+jj}, v{ST+cur+2*jj}, v{ST+cur+2*jj+1}\nv_cvt_pk_bf16_f32 v{f+4+jj}, v{ST+16+cur+2*jj}, v{ST+16+cur+2*jj+1}')
        for jj in range(8): a(f'v_xor_b32 v{f+8+jj}, v16, v{f+jj}')
        b = XF + 8*(j&3)
        a.wait(lgkm=f'dx{j}')
        z = '0' if j==0 else None
        a(f'v_mfma_f32_32x32x16_bf16 {vr(ACC_C,16)}, {vr(b)}, {vr(f)}, {z or vr(ACC_C,16)}')
        a(f'v_mfma_f32_32x32x16_bf16 {vr(ACC_S,16)}, {vr(b)}, {vr(f+4)}, {z or vr(ACC_S,16)}')
        if j<15:
            for i in range(8): a(f'v_fma_f32 v{ST+prev+i}, v15, v{ST+cur+i}, -v{ST+prev+i}')
        a(f'v_mfma_f32_32x32x16_bf16 {vr(ACC_C,16)}, {vr(b+4)}, {vr(f+8)}, {vr(ACC_C,16)}')
        if j<15:
            for i in range(8): a(f'v_fma_f32 v{ST+16+prev+i}, v15, v{ST+16+cur+i}, -v{ST+16+prev+i}')
        a(f'v_mfma_f32_32x32x16_bf16 {vr(ACC_S,16)}, {vr(b+4)}, {vr(f+12)}, {vr(ACC_S,16)}')
        for r in range(4): a(f'v_dot2c_f32_bf16 v{17+(r&1)}, s55, v{b+r}\nv_dot2c_f32_bf16 v19, v{b+r}, v{b+r}')
        cur, prev = prev, cur
    a('v_add_f32 v18, v17, v18')
    a(f's_lshl_b32 s3, s48, 10\ns_add_u32 s4, s3, {LST}\ns_lshl_b32 s3, s49, 4\ns_add_u32 s3, s3, s4')
    a('v_lshlrev_b32 v5, 5, v10\nv_lshl_add_u32 v6, v11, 3, v5\nv_add_u32 v6, s3, v6\nds_write_b64 v6, v[18:19]\nv_add_u32 v5, s4, v5')
    a.wait(lgkm=0); a('s_barrier')
    a('ds_read_b128 v[28:31], v5\nds_read_b128 v[32:35], v5 offset:16'); a.wait(lgkm=0)
    a('v_add_f32 v28, v28, v30\nv_add_f32 v29, v29, v31\nv_add_f32 v32, v32, v34\nv_add_f32 v33, v33, v35\nv_add_f32 v28, v28, v32\nv_add_f32 v29, v29, v33')
    a(f'v_mul_f32 v28, {hx(1/512)}, v28\nv_mul_f32 v29, {hx(1/512)}, v29\nv_fma_f32 v29, -v28, v28, v29\nv_add_f32 v29, {hx(1e-5)}, v29\nv_rsq_f32 v29, v29')
    a(f's_lshl_b32 s3, {SW}, 7\ns_add_u32 s3, s3, {LRR}\nv_lshl_add_u32 v5, v10, 2, s3\nds_write_b32 v5, v29\nv_lshl_add_u32 v5, v11, 4, s3')
    a.wait(lgkm=0)
    for g in range(4): a(f'ds_read_b128 {vr(48+4*g)}, v5 offset:{32*g}')
    a.wait(lgkm=0)
    for v in range(16): a(f'v_mul_f32 v{ACC_C+v}, v{ACC_C+v}, v{48+v}\nv_mul_f32 v{ACC_S+v}, -v{ACC_S+v}, v{48+v}')
    for u in range(2):
        for jj in range(4):
            a(f'v_cvt_pk_bf16_f32 v{FR+4*u+jj}, v{ACC_C+8*u+2*jj}, v{ACC_C+8*u+2*jj+1}\nv_cvt_pk_bf16_f32 v{FR+8+4*u+jj}, v{ACC_S+8*u+2*jj}, v{ACC_S+8*u+2*jj+1}')
    TR, TI = 128, 144
    for u in range(2):
        a(f'v_mfma_f32_32x32x16_bf16 {vr(TR,16)}, {vr(G+4*u)}, {vr(FR+4*u)}, {"0" if u==0 else vr(TR,16)}')
        a(f'v_mfma_f32_32x32x16_bf16 {vr(TI,16)}, {vr(G+4*u)}, {vr(FR+8+4*u)}, {"0" if u==0 else vr(TI,16)}')
    for u in range(2):
        a(f'v_mfma_f32_32x32x16_bf16 {vr(TR,16)}, {vr(G+8+4*u)}, {vr(FR+8+4*u)}, {vr(TR,16)}')
        a(f'v_mfma_f32_32x32x16_bf16 {vr(TI,16)}, {vr(G+16+4*u)}, {vr(FR+4*u)}, {vr(TI,16)}')
    a(f's_lshl_b32 s3, s52, 13\ns_lshl_b32 s4, s53, 7\ns_add_u32 s56, s3, s4')
    a('v_lshlrev_b32 v5, 18, v11\nv_lshl_add_u32 v5, v10, 2, v5')
    for v in range(16):
        p = 8*(v>>2) + (v&3)
        a(f'v_cvt_pk_bf16_f32 v{FR+v}, v{TR+v}, v{TI+v}\ns_add_u32 s3, s56, {WS_T + p*65536}\nbuffer_store_dword v{FR+v}, v5, {sWS}, s3 offen sc1')

def p1_dispatch(a, multi, after):
    a('s_and_b32 s4, s2, 7\ns_lshr_b32 s5, s2, 3\ns_and_b32 s6, s4, 1')
    a('s_mul_i32 s7, s6, 4\ns_sub_u32 s7, 24, s7\ns_cmp_lt_u32 s5, s7\ns_cbranch_scc1 L_p1_gemm')
    a(f's_sub_u32 s5, s5, s7\ns_cmp_lt_u32 s5, 8\ns_cbranch_scc0 {after}')
    a('s_lshl_b32 s46, s4, 1\ns_and_b32 s3, s5, 1\ns_add_u32 s46, s46, s3\ns_lshr_b32 s47, s5, 1')
    p1_dft(a)
    a(f's_branch {after}')
    a('L_p1_gemm:')
    a('s_lshr_b32 s46, s4, 1\ns_lshl_b32 s46, s46, 2\ns_and_b32 s3, s5, 3\ns_add_u32 s46, s46, s3\ns_lshr_b32 s47, s5, 2\ns_mul_i32 s3, s6, 6\ns_add_u32 s47, s47, s3')
    p1_gemm(a, multi)
```

```python
from common import *
LZ1, LT, LP = 131072, 147456, 155648
AR, BR, ACC = 128, 96, 64

def p2_ids(a):
    a('s_and_b32 s4, s2, 7\ns_lshr_b32 s5, s2, 3\ns_and_b32 s6, s4, 1\ns_lshr_b32 s7, s5, 3')
    a('s_lshr_b32 s46, s4, 1\ns_lshl_b32 s46, s46, 3\ns_and_b32 s50, s5, 7\ns_add_u32 s46, s46, s50')
    a('s_mul_i32 s47, s6, 21\ns_mul_i32 s3, s7, 5\ns_add_u32 s47, s47, s3\ns_cmp_eq_u32 s7, 3\ns_cselect_b32 s3, s6, 0\ns_add_u32 s47, s47, s3')
    a('s_add_u32 s3, s7, s6\ns_cmp_ge_u32 s3, 3\ns_cselect_b32 s48, 6, 5')
    a('s_lshl_b32 s49, s4, 2\ns_add_u32 s49, s49, s7')

def a_setup(a):
    a('v_lshrrev_b32 v7, 3, v1\nv_xor_b32 v8, v7, v1\nv_and_b32 v8, 7, v8\nv_lshlrev_b32 v8, 4, v8\nv_lshl_add_u32 v4, v7, 18, v8')
    a(f's_lshl_b32 s51, s46, 13\ns_lshl_b32 s3, {SW}, 9\ns_add_u32 s51, s51, s3\ns_lshl_b32 s52, {SW}, 14')
    a('v_and_b32 v7, 15, v1\nv_lshrrev_b32 v8, 4, v1\nv_and_b32 v9, 7, v1\nv_xor_b32 v8, v8, v9\nv_lshlrev_b32 v8, 4, v8\nv_lshl_add_u32 v5, v7, 7, v8')
    a('v_add_u32 v5, s52, v5\nv_xor_b32 v6, 64, v5')

def a_dma(a, rho, tag):
    for n in range(8):
        a(f's_add_u32 m0, s52, {(rho&1)*8192 + n*1024}')
        a(f's_add_u32 s3, s51, {(8*(n&3)*64 + (n>>2))*4096 + rho*128}')
        a(f'buffer_load_dwordx4 v4, {sWSP}, s3 offen lds', tag=(tag if n==7 else None))

def a_read(a, rho, tag):
    for st in range(2):
        for tt in range(4):
            a(f'ds_read_b128 {vr(AR+4*((2*rho+st)*4+tt))}, v{5+st} offset:{(rho&1)*8192 + 2048*tt}', tag=(tag if (st,tt)==(1,3) else None))

def b_load(a, e, step, tag):
    if e<5: a(f's_add_u32 s3, s53, {65536*e + 1024*step}')
    else:   a(f's_add_u32 s3, s54, {1024*step}')
    a(f'buffer_load_dwordx4 {vr(BR+4*step)}, v10, {sWS}, s3 offen', tag=tag)

def fft_loads(a):
    a(f's_lshl_b32 s3, {SW}, 10\ns_add_u32 m0, s3, {LT}\ns_lshl_b32 s4, s49, 16\ns_add_u32 s3, s3, s4\ns_lshl_b32 s4, s50, 13\ns_add_u32 s3, s3, s4\ns_add_u32 s3, s3, {WS_T}')
    a(f'buffer_load_dwordx4 v10, {sWS}, s3 offen lds', tag='T')

def fft_w_loads(a):
    a(f's_and_b32 s55, {SW}, 1\ns_lshr_b32 s56, {SW}, 1\nv_and_b32 v12, 15, v1\nv_lshrrev_b32 v13, 4, v1')
    a(f'v_mul_u32_u24 v7, {4*32*514}, v13\nv_lshl_add_u32 v7, v12, 1, v7')
    a('s_lshl_b32 s3, s56, 9\ns_add_u32 s3, s3, s49\ns_mul_i32 s3, s3, 514\ns_lshl_b32 s4, s50, 1\ns_add_u32 s4, s4, s55\ns_lshl_b32 s57, s4, 4\ns_add_u32 s57, s57, 1\ns_lshl_b32 s4, s57, 1\ns_add_u32 s3, s3, s4')
    for v in range(4):
        a(f's_add_u32 s4, s3, {32*v*514}\nbuffer_load_ushort v{88+v}, v7, {sWR}, s4 offen\nbuffer_load_ushort v{92+v}, v7, {sWI}, s4 offen', tag=('W' if v==3 else None))

def fft_consts(a):
    FA, FB = 32, 48
    a('s_lshl_b32 s3, s56, 4\nv_add_u32 v7, s3, v12\nv_lshlrev_b32 v8, 2, v13\nv_mul_u32_u24 v8, v8, v7')
    for y in range(4):
        for j in range(4):
            a(f'v_mad_u32_u24 v9, v7, {16*y+j}, v8\nv_and_b32 v9, 63, v9\nv_cvt_f32_u32 v9, v9\nv_mul_f32 v9, {hx(1/64)}, v9\nv_cos_f32 v16, v9\nv_sin_f32 v17, v9')
            a(f'v_cvt_pk_bf16_f32 v{FA+4*y+j}, v16, v17\nv_cvt_pk_bf16_f32 v{FB+4*y+j}, -v17, v16')
    a(f'v_add_u32 v9, s57, v12\nv_cmp_eq_u32 vcc, 0x100, v9\nv_mov_b32 v14, {hx(2.0**-19)}\nv_mov_b32 v9, {hx(2.0**-20)}\nv_cndmask_b32 v14, v14, v9, vcc')

def fft_body(a):
    FA, FB, TF, D, W = 32, 48, 64, 80, 88
    a(f's_lshl_b32 s3, s55, 6\ns_add_u32 s3, s3, {LT}\nv_lshlrev_b32 v7, 9, v13\nv_lshl_add_u32 v7, v12, 2, v7\nv_add_u32 v7, s3, v7')
    a.wait(vm='T'); a('s_barrier')
    for y in range(4):
        for j in range(4): a(f'ds_read_b32 v{TF+4*y+j}, v7 offset:{2048*y+128*j}', tag=(f'tf{y}' if j==3 else None))
    for y in range(4):
        a.wait(lgkm=f'tf{y}')
        a(f'v_mfma_f32_16x16x32_bf16 {vr(D)}, {vr(FA+4*y)}, {vr(TF+4*y)}, {"0" if y==0 else vr(D)}')
        a(f'v_mfma_f32_16x16x32_bf16 {vr(D+4)}, {vr(FB+4*y)}, {vr(TF+4*y)}, {"0" if y==0 else vr(D+4)}')
    a.wait(vm='W')
    for v in range(8): a(f'v_lshlrev_b32 v{W+v}, 16, v{W+v}\nv_mul_f32 v{W+v}, v14, v{W+v}')
    for r in range(16): a(f'v_xor_b32 v{FA+r}, 0x80000000, v{FA+r}\nv_xor_b32 v{FB+r}, 0x8000, v{FB+r}')
    for v in range(4):
        a(f'v_mul_f32 v16, v{D+v}, v{W+v}\nv_mul_f32 v17, v{D+v}, v{W+4+v}\nv_fma_f32 v16, -v{D+4+v}, v{W+4+v}, v16\nv_fma_f32 v17, v{D+4+v}, v{W+v}, v17\nv_cvt_pk_bf16_f32 v{20+v}, v16, v17')
    a(f's_lshl_b32 s3, s55, 12\ns_add_u32 s3, s3, {LP}\nv_add_u32 v7, s3, v10\ns_lshl_b32 s3, s56, 10\nv_add_u32 v8, s3, v7\nds_write_b128 v8, v[20:23]')
    a.wait(lgkm=0); a('s_barrier')
    for y in range(4): a(f'ds_read_b128 {vr(TF+4*y)}, v7 offset:{1024*y}', tag=f'pf{y}')
    for y in range(4):
        a.wait(lgkm=f'pf{y}')
        a(f'v_mfma_f32_16x16x32_bf16 {vr(D)}, {vr(TF+4*y)}, {vr(FA+4*y)}, {"0" if y==0 else vr(D)}')
        a(f'v_mfma_f32_16x16x32_bf16 {vr(D+4)}, {vr(TF+4*y)}, {vr(FB+4*y)}, {"0" if y==0 else vr(D+4)}')
    a('s_lshl_b32 s3, s55, 1\nv_lshrrev_b32 v7, 1, v13\nv_add_u32 v7, s3, v7\nv_and_b32 v8, 7, v12\nv_xor_b32 v7, v7, v8\nv_lshlrev_b32 v7, 4, v7')
    a(f'v_and_b32 v8, 1, v13\nv_lshl_add_u32 v7, v8, 3, v7\nv_lshl_add_u32 v7, v12, 7, v7\ns_lshl_b32 s3, s56, 11\ns_add_u32 s3, s3, {LT}\nv_add_u32 v7, s3, v7\nv_xor_b32 v8, 64, v7')
    a(f'v_cvt_pk_bf16_f32 v16, v{D}, v{D+1}\nv_cvt_pk_bf16_f32 v17, v{D+2}, v{D+3}\nv_cvt_pk_bf16_f32 v18, v{D+4}, v{D+5}\nv_cvt_pk_bf16_f32 v19, v{D+6}, v{D+7}')
    a('ds_write_b64 v7, v[16:17]\nds_write_b64 v8, v[18:19]')
    a(f'v_lshrrev_b32 v7, 3, v1\nv_xor_b32 v8, v7, v1\nv_and_b32 v8, 7, v8\nv_lshlrev_b32 v8, 4, v8\nv_lshl_add_u32 v8, v7, 7, v8\ns_lshl_b32 s3, {SW}, 10\ns_add_u32 s3, s3, {LT}\nv_add_u32 v8, s3, v8')
    a.wait(lgkm=0); a('s_barrier')
    a('ds_read_b128 v[16:19], v8')
    a('v_and_b32 v9, 7, v1\nv_lshlrev_b32 v9, 4, v9\nv_lshl_add_u32 v9, v7, 15, v9')
    a(f's_lshl_b32 s3, {SW}, 18\ns_lshl_b32 s4, s49, 10\ns_add_u32 s3, s3, s4\ns_lshl_b32 s4, s50, 7\ns_add_u32 s3, s3, s4\ns_add_u32 s3, s3, {WS_U}')
    a.wait(lgkm=0)
    a(f'buffer_store_dwordx4 v[16:19], v9, {sWS}, s3 offen sc1', tag='Ust')

def z1_loads(a):
    a(f'v_lshrrev_b32 v7, 4, v1\ns_lshl_b32 s3, {SW}, 2\nv_add_u32 v7, s3, v7\nv_xor_b32 v8, v7, v1\nv_and_b32 v8, 15, v8')
    a(f'v_mul_u32_u24 v7, {64*1408}, v7\nv_lshl_add_u32 v7, v8, 4, v7\ns_lshl_b32 s3, s48, 1\nv_cmp_gt_u32 vcc, s3, v8\nv_mov_b32 v8, 0x40000000\nv_cndmask_b32 v7, v8, v7, vcc')
    a(f's_mul_i32 s3, s46, {2*1408}\ns_lshl_b32 s4, s47, 5\ns_add_u32 s3, s3, s4\ns_lshl_b32 s4, {SW}, 10')
    for e in range(2):
        a(f's_add_u32 m0, s4, {LZ1 + e*8192}\ns_add_u32 s5, s3, {WS_Z1 + e*1408}\nbuffer_load_dwordx4 v7, {sWS}, s5 offen lds', tag=('Z1' if e==1 else None))

def red_setup(a):
    a(f's_and_b32 s58, {SW}, 3\ns_lshr_b32 s59, {SW}, 2')
    a('v_and_b32 v7, 31, v1\ns_lshl_b32 s3, s59, 5\nv_add_u32 v7, s3, v7\nv_lshlrev_b32 v7, 4, v7\nv_lshrrev_b32 v8, 5, v1\nv_lshl_add_u32 v7, v8, 14, v7\ns_lshl_b32 s3, s58, 10\nv_add_u32 v32, s3, v7')
    a(f's_lshl_b32 s3, {SW}, 12\nv_add_u32 v33, s3, v10')
    a('v_and_b32 v7, 15, v1\nv_xor_b32 v9, s59, v7\nv_lshlrev_b32 v9, 4, v9\nv_lshl_add_u32 v9, v7, 8, v9\nv_bfe_u32 v16, v1, 4, 1\nv_lshl_add_u32 v9, v16, 3, v9\nv_lshl_add_u32 v9, v8, 2, v9')
    a(f's_lshl_b32 s3, s58, 12\ns_add_u32 s3, s3, {LZ1}\nv_add_u32 v34, s3, v9')
    a('s_lshl_b32 s3, s59, 1\nv_add_u32 v16, s3, v16\nv_lshlrev_b32 v16, 8, v16\nv_lshl_add_u32 v16, v7, 3, v16\nv_lshl_add_u32 v35, v8, 30, v16')
    a(f's_lshr_b32 s3, s58, 1\ns_lshl_b32 s4, s46, 1\ns_add_u32 s3, s3, s4\ns_mul_i32 s60, s3, {43*1024}\ns_and_b32 s4, s58, 1\ns_lshl_b32 s5, s4, 7\ns_add_u32 s60, s60, s5\ns_lshl_b32 s5, s47, 10\ns_add_u32 s60, s60, s5\ns_add_u32 s60, s60, {WS_H}')
    a(f's_lshl_b32 s4, s4, 10\ns_add_u32 s3, s3, s4\ns_lshl_b32 s3, s3, 1\nv_lshlrev_b32 v7, 7, v7\nbuffer_load_ushort v36, v7, {sBSP}, s3 offen', tag='bias')

def reduce_stream(e):
    r = Asm()
    T = 16
    for i in range(4): r(f'ds_read_b128 {vr(T+4*i)}, v32 offset:{(e&1)*32768 + 4096*i}')
    r(f'v_xor_b32 v37, {32*e}, v34\nds_read_b32 v37, v37', tag=f'rd{e}')
    r.wait(lgkm=f'rd{e}')
    for c in range(4): r(f'v_add_f32 v{T+c}, v{T+c}, v{T+4+c}\nv_add_f32 v{T+8+c}, v{T+8+c}, v{T+12+c}')
    for c in range(4): r(f'v_add_f32 v{T+c}, v{T+c}, v{T+8+c}')
    r(f'v_permlane32_swap_b32 v{T}, v{T+2}\nv_permlane32_swap_b32 v{T+1}, v{T+3}')
    r(f'v_lshlrev_b32 v{T+4}, 16, v37\nv_and_b32 v{T+5}, 0xffff0000, v37')
    r(f'v_add_f32 v{T}, v{T}, v{T+2}\nv_add_f32 v{T+1}, v{T+1}, v{T+3}\nv_add_f32 v{T}, v{T}, v36\nv_add_f32 v{T+1}, v{T+1}, v36')
    r(f'v_mul_f32 v{T}, v{T}, v{T+4}\nv_mul_f32 v{T+1}, v{T+1}, v{T+5}\nv_cvt_pk_bf16_f32 v38, v{T}, v{T+1}\nv_mov_b32 v39, v38\nv_permlane32_swap_b32 v38, v39')
    r(f's_add_u32 s3, s60, {1024*e}\nbuffer_store_dwordx2 v[38:39], v35, {sWS}, s3 offen sc1')
    return r.L

def gemm2(a):
    for e in range(6):
        if e==5: a('s_cmp_eq_u32 s48, 5\ns_cbranch_scc1 L_p2_tail5\nL_soft_p2_t5:')
        m = Asm()
        acc = ACC + 16*(e&1)
        for step in range(8):
            m.wait(vm=f'b{e}_{step}')
            for tt in range(4):
                m(f'v_mfma_f32_16x16x32_bf16 {vr(acc+4*tt)}, {vr(BR+4*step)}, {vr(AR+4*(step*4+tt))}, {"0" if step==0 else vr(acc+4*tt)}')
            if e<5: b_load(m, e+1, step, f'b{e+1}_{step}')
        if e>0:
            fill = reduce_stream(e-1)
            cnt = [0]
            def pos(k, ins):
                if ins.kind=='mfma':
                    cnt[0]+=1
                    if cnt[0]==1: return 6
                    if cnt[0]>=8: return 2
                return 0
            m.L = interleave(m.L, fill, pos)
        a.extend(m.L)
        for tt in range(4): a(f'ds_write_b128 v33, {vr(acc+4*tt)} offset:{(e&1)*32768 + 1024*tt}')
        a.wait(lgkm=0); a('s_barrier')
    a.extend(reduce_stream(5))
    a('s_branch L_p2_done')
    a('L_p2_tail5:')
    t = reduce_stream(4)
    for i in t:
        if i.tag: i.tag = i.tag+'x'
        if i.wait: i.wait = (i.wait[0], i.wait[1]+'x')
    a.extend(t)
    a('L_p2_done:')

def p2_all(a, multi):
    p2_ids(a)
    a('v_lshlrev_b32 v10, 4, v1')
    fft_loads(a)
    fft_w_loads(a)
    a_setup(a)
    a_dma(a, 0, 'A0'); a_dma(a, 1, 'A1')
    a(f's_add_u32 s3, s47, 1\ns_lshl_b32 s53, s3, 16\ns_lshl_b32 s3, {SW}, 13\ns_add_u32 s53, s53, s3\ns_add_u32 s53, s53, {WS_Z2}')
    a(f's_add_u32 s54, s53, {65536*5}\ns_cmp_eq_u32 s48, 6\ns_cselect_b32 s54, s54, 0x40000000')
    fft_consts(a)
    fft_body(a)
    a.wait(vm='A0'); a_read(a, 0, 'ar0'); a.wait(lgkm='ar0'); a_dma(a, 2, 'A2')
    a.wait(vm='A1'); a_read(a, 1, 'ar1'); a.wait(lgkm='ar1'); a_dma(a, 3, 'A3')
    for step in range(8): b_load(a, 0, step, f'b0_{step}')
    z1_loads(a)
    red_setup(a)
    a.wait(vm='A2'); a_read(a, 2, 'ar2')
    a.wait(vm='A3'); a_read(a, 3, 'ar3')
    a.wait(vm='bias', lgkm=0); a('s_barrier')
    a('v_lshlrev_b32 v36, 16, v36')
    gemm2(a)
```

```python
from common import *
LU, LH, LEO, LW = 0, 32768, 77824, 94208
NS = 17

def p3_ids(a):
    a('s_and_b32 s4, s2, 7\ns_lshr_b32 s5, s2, 3\ns_lshr_b32 s46, s4, 1\ns_lshl_b32 s46, s46, 4\ns_and_b32 s3, s5, 15\ns_add_u32 s46, s46, s3')
    a(f's_and_b32 s47, s4, 1\ns_lshl_b32 s47, s47, 1\ns_lshr_b32 s3, s5, 4\ns_add_u32 s47, s47, s3\ns_and_b32 s48, {SW}, 1\ns_bfe_u32 s49, {SW}, 0x10001')
    a('v_and_b32 v10, 31, v1\nv_lshrrev_b32 v11, 5, v1')

def p3_dft(a):
    AR_, AI, ST, EF, UF, G = 64, 80, 96, 112, 128, 32
    a(f's_and_b32 s50, {SW}, 3')
    a(f's_lshl_b32 s3, s46, 15\ns_lshl_b32 s4, s50, 13\ns_add_u32 s51, s3, s4\ns_add_u32 s51, s51, {WS_U}\ns_and_b32 s3, s50, 1\ns_lshl_b32 s3, s3, 3\nv_xor_b32 v4, s3, v1\nv_lshlrev_b32 v4, 4, v4')
    for n in range(8):
        a(f'v_xor_b32 v{5+(n&1)}, {16*n}, v4\ns_add_u32 m0, s4, {LU + 1024*n}\ns_add_u32 s3, s51, {1024*n}\nbuffer_load_dwordx4 v{5+(n&1)}, {sWS}, s3 offen lds', tag=('U' if n==7 else None))
    a(f's_mul_i32 s3, s46, {43*1024}\ns_lshl_b32 s4, s50, 10\ns_add_u32 s51, s3, s4\ns_add_u32 s51, s51, {WS_H}\nv_lshlrev_b32 v4, 4, v1')
    for i in range(11):
        a(f's_add_u32 m0, s4, {LH + 4096*i}\ns_add_u32 s3, s51, {4096*i}')
        if i==10: a('s_cmp_eq_u32 s50, 3\ns_cselect_b32 s3, 0x40000000, s3')
        a(f'buffer_load_dwordx4 v4, {sWS}, s3 offen lds', tag=('H' if i==10 else None))
    a('v_and_b32 v5, 15, v10\nv_xor_b32 v5, v5, v11\nv_lshlrev_b32 v5, 4, v5\nv_lshl_add_u32 v16, v10, 10, v5')
    for c in range(1,8): a(f'v_xor_b32 v{16+c}, {32*c}, v16')
    a('s_lshl_b32 s3, s47, 7\ns_lshl_b32 s4, s48, 6\ns_add_u32 s3, s3, s4\ns_add_u32 s3, s3, 1\nv_lshl_add_u32 v14, v10, 1, s3')
    a('v_lshlrev_b32 v5, 3, v11\nv_add_u32 v5, 1, v5\nv_mul_u32_u24 v5, v5, v14\ns_lshl_b32 s3, s49, 8\nv_subrev_u32 v5, s3, v5\nv_lshlrev_b32 v7, 4, v14')
    for i in range(8):
        a(f'v_and_b32 v8, 1023, v5\nv_cvt_f32_u32 v8, v8\nv_mul_f32 v8, {hx(1/1024)}, v8\nv_cos_f32 v{ST+i}, v8')
        a(f'v_sub_u32 v9, v5, v7\nv_and_b32 v9, 1023, v9\nv_cvt_f32_u32 v9, v9\nv_mul_f32 v9, {hx(1/1024)}, v9\nv_cos_f32 v{ST+8+i}, v9')
        if i<7: a('v_add_u32 v5, v5, v14')
    a(f'v_and_b32 v8, 63, v14\nv_cvt_f32_u32 v8, v8\nv_mul_f32 v8, {hx(1/64)}, v8\nv_cos_f32 v15, v8\nv_add_f32 v15, v15, v15')
    a('v_lshlrev_b32 v6, 6, v10\nv_add_u32 v6, s46, v6\nv_lshlrev_b32 v5, 2, v11\nv_mul_u32_u24 v5, v5, v6\ns_lshl_b32 s3, s49, 9\nv_add_u32 v5, s3, v5')
    for u in range(2):
        for jj in range(4):
            for e in range(2):
                i = 2*jj+e; po = 8*(2*u+(i>>2)) + (i&3)
                a(f'v_mad_u32_u24 v8, v6, {po}, v5\nv_and_b32 v8, 2047, v8\nv_cvt_f32_u32 v8, v8\nv_mul_f32 v8, {hx(1/2048)}, v8\nv_cos_f32 v{24+e}, v8\nv_sin_f32 v{26+e}, v8')
            a(f'v_cvt_pk_bf16_f32 v{G+4*u+jj}, v24, v25\nv_cvt_pk_bf16_f32 v{G+8+4*u+jj}, -v26, -v27')
    def rd(j):
        kg, u = j>>1, j&1; b = UF + 8*(j&3)
        c = (kg&1)*4 + u
        a(f'ds_read_b128 {vr(b)}, v{16+c} offset:{LU + 256*(kg>>1)}\nds_read_b128 {vr(b+4)}, v{16+c+2} offset:{LU + 256*(kg>>1)}', tag=f'u{j}')
    a.wait(vm='U'); a('s_barrier')
    rd(0); rd(1)
    cur, prev = 0, 8
    for j in range(16):
        if j==8: a.wait(vm='H'); a('s_barrier')
        if j+2 < 16: rd(j+2)
        f = EF + 4*(j&1); b = UF + 8*(j&3)
        for jj in range(4): a(f'v_cvt_pk_bf16_f32 v{f+jj}, v{ST+cur+2*jj}, v{ST+cur+2*jj+1}')
        a.wait(lgkm=f'u{j}')
        a(f'v_mfma_f32_32x32x16_bf16 {vr(AR_,16)}, {vr(b)}, {vr(f)}, {"0" if j==0 else vr(AR_,16)}')
        if j<15:
            for i in range(4): a(f'v_fma_f32 v{ST+prev+i}, v15, v{ST+cur+i}, -v{ST+prev+i}')
        a(f'v_mfma_f32_32x32x16_bf16 {vr(AI,16)}, {vr(b+4)}, {vr(f)}, {"0" if j==0 else vr(AI,16)}')
        if j<15:
            for i in range(4,8): a(f'v_fma_f32 v{ST+prev+i}, v15, v{ST+cur+i}, -v{ST+prev+i}')
        cur, prev = prev, cur
    for u in range(2):
        for jj in range(4): a(f'v_cvt_pk_bf16_f32 v{UF+4*u+jj}, v{AR_+8*u+2*jj}, v{AR_+8*u+2*jj+1}')
    for u in range(2):
        for jj in range(4): a(f'v_cvt_pk_bf16_f32 v{UF+8+4*u+jj}, v{AI+8*u+2*jj}, v{AI+8*u+2*jj+1}')
    for n in range(4):
        a(f'v_mfma_f32_32x32x16_bf16 {vr(ST,16)}, {vr(G+4*n)}, {vr(UF+4*n)}, {"0" if n==0 else vr(ST,16)}')
    a(f's_lshl_b32 s3, s49, 13\ns_lshl_b32 s4, s48, 12\ns_add_u32 s3, s3, s4\ns_add_u32 s3, s3, {LEO}\nv_add_u32 v4, s3, v4')
    for g in range(4): a(f'ds_write_b128 v4, {vr(ST+4*g)} offset:{1024*g}')
    a.wait(lgkm=0); a('s_barrier')

def p3_gemm(a):
    WO, ACC, HF, XV, EO = 80, 64, 48, 32, 16
    a('s_lshl_b32 s3, s47, 6\ns_lshl_b32 s4, s48, 5\ns_add_u32 s3, s3, s4\ns_sub_u32 s4, 480, s3\ns_cmp_eq_u32 s49, 0\ns_cselect_b32 s50, s3, s4')
    a(f's_mul_i32 s51, {SW}, {NS*1024}\ns_add_u32 s51, s51, {LW}\ns_lshl_b32 s52, s50, 1')
    a('v_lshrrev_b32 v5, 2, v1\nv_and_b32 v6, 3, v1\nv_lshlrev_b32 v6, 4, v6\nv_lshl_add_u32 v4, v5, 10, v6')
    def dma(st):
        a(f's_add_u32 m0, s51, {(st%NS)*1024}\ns_add_u32 s3, s52, {st*16384}\nbuffer_load_dwordx4 v4, {sWOUT}, s3 offen lds', tag=f'wo{st}')
    for st in range(NS): dma(st)
    a('v_lshlrev_b32 v7, 18, v11\nv_lshl_add_u32 v7, v10, 1, v7\ns_lshl_b32 s3, s46, 10\ns_add_u32 s53, s3, s52')
    for v in range(16):
        a(f's_add_u32 s3, s53, {(8*(v>>2)+(v&3))*65536}\nbuffer_load_ushort v{XV+v}, v7, {sX}, s3 offen', tag=('xv' if v==15 else None))
    a('v_and_b32 v5, 15, v1\nv_lshrrev_b32 v6, 2, v5\nv_lshl_add_u32 v6, v11, 3, v6\nv_lshlrev_b32 v8, 6, v6\nv_bfe_u32 v6, v1, 4, 1\nv_lshl_add_u32 v8, v6, 5, v8\nv_and_b32 v6, 3, v1\nv_lshl_add_u32 v8, v6, 3, v8\nv_add_u32 v8, s51, v8')
    a(f'v_lshlrev_b32 v9, 9, v11\nv_lshl_add_u32 v9, v10, 3, v9\nv_add_u32 v9, {LH}, v9')
    a(f'v_sub_u32 v5, 31, v10\ns_cmp_eq_u32 s49, 0\ns_cselect_b64 vcc, -1, 0\nv_cndmask_b32 v5, v5, v10, vcc\nv_lshl_add_u32 v5, v11, 5, v5\ns_lshl_b32 s3, s48, 12\ns_add_u32 s3, s3, {LEO}\nv_lshl_add_u32 v12, v5, 4, s3')
    a('s_cmp_eq_u32 s49, 0\ns_cselect_b32 s54, 1.0, -1.0')
    a('s_barrier')
    for st in range(43):
        a.wait(vm=f'wo{st}')
        a(f'ds_read_b64_tr_b16 {vr(WO+4*st,2)}, v8 offset:{(st%NS)*1024}\nds_read_b64_tr_b16 {vr(WO+4*st+2,2)}, v8 offset:{(st%NS)*1024+256}', tag=f'wr{st}')
        if st>=1 and st-1+NS < 43:
            a.wait(lgkm=f'wr{st-1}'); dma(st-1+NS)
    a('s_barrier')
    def rd(st):
        f = HF+4*(st&3)
        a(f'ds_read_b64 {vr(f,2)}, v9 offset:{st*1024}\nds_read_b64 {vr(f+2,2)}, v9 offset:{st*1024+256}', tag=f'h{st}')
    for st in range(3): rd(st)
    for st in range(43):
        if st+3 < 43: rd(st+3)
        a.wait(lgkm=f'h{st}')
        a(f'v_mfma_f32_32x32x16_bf16 {vr(ACC,16)}, {vr(HF+4*(st&3))}, {vr(WO+4*st)}, {"0" if st==0 else vr(ACC,16)}')
    a.wait(vm='xv')
    for v in range(16): a(f'v_lshlrev_b32 v{XV+v}, 16, v{XV+v}')
    a('s_barrier')
    for g in range(4): a(f'ds_read_b128 {vr(EO+4*g)}, v12 offset:{1024*g}\nds_read_b128 {vr(HF+4*g)}, v12 offset:{8192+1024*g}', tag=f'eo{g}')
    T = 80
    for g in range(4):
        R = range(4*g, 4*g+4)
        for v in R: a(f'v_mul_f32 v{T+v}, {hx(-1.4426950408889634)}, v{ACC+v}')
        for v in R: a(f'v_exp_f32 v{T+v}, v{T+v}')
        for v in R: a(f'v_add_f32 v{T+v}, 1.0, v{T+v}')
        for v in R: a(f'v_rcp_f32 v{T+v}, v{T+v}')
        a.wait(lgkm=f'eo{g}')
        for v in R: a(f'v_fma_f32 v{EO+v}, s54, v{HF+v}, v{EO+v}')
        for v in R: a(f'v_mul_f32 v{T+v}, v{T+v}, v{ACC+v}')
        for v in R: a(f'v_fma_f32 v{XV+v}, v{EO+v}, v{T+v}, v{XV+v}')
        for v in (4*g, 4*g+2):
            a(f'v_cvt_pk_bf16_f32 v{T+v}, v{XV+v}, v{XV+v+1}')
            a(f's_add_u32 s3, s53, {(8*(v>>2)+(v&3))*65536}\nbuffer_store_short v{T+v}, v7, {sOUT}, s3 offen')
            a(f's_add_u32 s3, s53, {(8*(v>>2)+(v&3)+1)*65536}\nbuffer_store_short_d16_hi v{T+v}, v7, {sOUT}, s3 offen')

def p3_all(a, multi):
    p3_ids(a)
    a(f's_cmp_lt_u32 {SW}, 4\ns_cbranch_scc1 L_p3_gemm')
    p3_dft(a)
    a('s_branch L_p3_done\nL_p3_gemm:')
    p3_gemm(a)
    a('L_p3_done:')
```

```python
import sys
from common import *
import p1
def build_multi(nk=3):
    a = Asm()
    heads = []
    names = ['k1_kernel','k2_kernel','k3_kernel'][:nk]
    prologue(a, 'k1_kernel', 'L_k1_end', 'L_k1_exit')
    p1.p1_dispatch(a, True, 'L_k1_exit')
    a('L_k1_exit:\ns_endpgm\nL_k1_end:')
    if nk>=2:
        import p2
        prologue(a, 'k2_kernel', 'L_k2_end', 'L_k2_exit')
        p2.p2_all(a, True)
        a('L_k2_exit:\ns_endpgm\nL_k2_end:')
    if nk>=3:
        import p3
        prologue(a, 'k3_kernel', 'L_k3_end', 'L_k3_exit')
        p3.p3_all(a, True)
        a('L_k3_exit:\ns_endpgm\nL_k3_end:')
    body, added = render(a.L)
    hdr = ''.join(f'; @launch kernel={n} grid=(256,1,1) block=(512,1,1) lds=163840\n' for n in names)
    ref = open('recurrent_scan__spectral_gfnet__mixer_gmlp__prompt.s.ref').read().split('\n')
    top = ''.join(l+'\n' for l in ref[:12])
    txt = top + hdr + '.amdgcn_target "amdgcn-amd-amdhsa--gfx950"\n.text\n' + body + '.section .rodata,"a"\n' + ''.join(KD.format(name=n) for n in names)
    return txt, added, len(a.L)
if __name__ == '__main__':
    nk = int(sys.argv[2]) if len(sys.argv)>2 else 3
    txt, added, n = build_multi(nk)
    open(sys.argv[1],'w').write(txt)
    print('instrs', n, 'nop states added', added)
```

```python
from dsl import *
import math
WS_Z1   = 0x000000
WS_Z2   = 0x300000
WS_T    = 0x600000
WS_U    = 0x800000
WS_H    = 0xA00000
WS_STAT = 0xD00000
WS_FLAG = 0xE00000
WS_EPOCH = WS_FLAG
WS_F1   = WS_FLAG + 0x1000
WS_FU   = WS_FLAG + 0x8000
WS_FH   = WS_FLAG + 0x10000
WS_SIZE = 0x1000000
sX, sWIN, sWS, sWSP, sWR, sWI, sBSP, sWOUT, sOUT = [f's[{8+4*i}:{11+4*i}]' for i in range(9)]
SW = 's44'
SN = 's45'
def f2u(x):
    import struct
    return struct.unpack('<I', struct.pack('<f', x))[0]
def hx(x): return hex(f2u(x))

def prologue(a, name, endlabel, exitlabel, persist=False):
    a(f'.globl {name}\n.p2align 8\n.type {name},@function\n{name}:')
    a(f's_cmp_ge_u32 s2, 256\ns_cbranch_scc1 {exitlabel}')
    stamp(a, 0); stamp_clear(a)
    a('s_load_dwordx16 s[64:79], s[0:1], 0\ns_load_dwordx4 s[80:83], s[0:1], 64\ns_load_dwordx2 s[84:85], s[0:1], 80')
    a(f's_getpc_b64 s[4:5]\nL_soft_pc_{name}:')
    a(f's_lshr_b32 s3, s2, 3\ns_mul_i32 s3, s3, (({endlabel}-L_soft_pc_{name})/32+127)/128*128')
    a(f'v_and_b32 v1, 63, v0\nv_lshrrev_b32 v2, 6, v0')
    a(f'v_min_u32 v3, (({endlabel}-L_soft_pc_{name})/32+127)/128-1, v0\nv_lshlrev_b32 v3, 7, v3\nv_add_u32 v3, s3, v3')
    a(f'v_min_u32 v3, {endlabel}-L_soft_pc_{name}-4, v3')
    a(f'v_readfirstlane_b32 {SW}, v2')
    a('global_load_dword v3, v3, s[4:5]')
    a('s_waitcnt lgkmcnt(0)')
    sizes = [2097152, 512*1376*2, WS_SIZE, 2048*2048*2, 2048*257*2, 2048*257*2, 4096, 688*512*2, 2097152]
    ptrs  = [64, 72, 84, 74, 66, 68, 76, 78, 80]
    for i,(sz,p) in enumerate(zip(sizes,ptrs)):
        b = 8+4*i
        a(f's_mov_b32 s{b}, s{p}\ns_mov_b32 s{b+1}, s{p+1}\ns_mov_b32 s{b+2}, {sz}\ns_mov_b32 s{b+3}, 0x00020000')
    if persist:
        a(f's_add_u32 s4, s84, {WS_EPOCH}\ns_addc_u32 s5, s85, 0\ns_load_dword {SN}, s[4:5], 0\ns_waitcnt lgkmcnt(0)\ns_mul_i32 {SN}, {SN}, 0x9E3779B1\ns_add_u32 {SN}, {SN}, 0x7F4A7C15')

def vr(b, n=4): return f'v[{b}:{b+n-1}]'

KD = '''.p2align 6
.amdhsa_kernel {name}
  .amdhsa_next_free_vgpr 256
  .amdhsa_next_free_sgpr 102
  .amdhsa_accum_offset 256
  .amdhsa_group_segment_fixed_size 0
  .amdhsa_kernarg_size 88
  .amdhsa_user_sgpr_count 2
  .amdhsa_user_sgpr_kernarg_segment_ptr 1
  .amdhsa_system_sgpr_workgroup_id_x 1
.end_amdhsa_kernel
'''

import os
STAMP = os.environ.get('STAMP')
WS_STAMP = 0xF00000
def stamp(a, idx):
    if not STAMP: return
    a(f'{"s_memtime" if STAMP=="cyc" else "s_memrealtime"} s[{86+2*idx}:{87+2*idx}]')
def stamp_clear(a):
    if not STAMP: return
    for i in range(1,8): a(f's_mov_b32 s{86+2*i}, 0')
def stamp_flush(a, kidx):
    if not STAMP: return
    a('s_waitcnt vmcnt(0)')
    stamp(a, 7)
    a('s_waitcnt lgkmcnt(0)')
    for i in range(8): a(f'v_writelane_b32 v2, s{86+2*i}, {i}')
    a(f'v_and_b32 v3, 63, v0\nv_min_u32 v4, 8, v3\nv_lshrrev_b32 v4, 3, v4\nv_lshlrev_b32 v4, 30, v4\nv_lshl_add_u32 v3, v3, 2, v4')
    a(f's_lshl_b32 s3, s2, 3\ns_add_u32 s3, s3, {SW}\ns_lshl_b32 s3, s3, 5\ns_add_u32 s3, s3, {WS_STAMP + kidx*65536}')
    a(f'buffer_store_dword v2, v3, {sWS}, s3 offen')

_pl = [0]
def poll(a, loadtext, regs, maskreg=None, limit=20000):
    _pl[0] += 1; n = _pl[0]
    a(f's_mov_b32 s61, 0\nL_poll{n}:')
    a(loadtext + '\ns_waitcnt vmcnt(0)')
    a(f'v_xor_b32 v2, {SN}, v{regs[0]}')
    for r in regs[1:]: a(f'v_xor_b32 v{r}, {SN}, v{r}\nv_or_b32 v2, v2, v{r}')
    a(f'v_cmp_ne_u32 vcc, 0, v2\ns_add_u32 s61, s61, 1\ns_cmp_gt_u32 s61, {limit}\ns_cbranch_scc1 L_pollx{n}\ns_cbranch_vccnz L_poll{n}\nL_pollx{n}:')

def publish(a, nrep, repstride, soff):
    a(f'v_mul_u32_u24 v2, {repstride}, v1\nv_cmp_gt_u32 vcc, {nrep}, v1\nv_mov_b32 v3, 0x40000000\nv_cndmask_b32 v2, v3, v2, vcc\nv_mov_b32 v3, {SN}')
    a(f'buffer_store_dword v3, v2, {sWS}, {soff} offen sc1')
```

```python
from common import *
import os
EXP = os.environ.get('EXP','')
SLOT = 16384
MISC = 147456
LST, LCS, LCF, LZ, LRR = MISC, MISC+4096, MISC+8192, MISC+10240, MISC+12288
C0 = -2*0.7978845608028654*1.4426950408889634
C1 = C0*0.044715

def x_dma_setup(a, rowstride_shift):
    a(f'v_lshrrev_b32 v5, 4, v1\ns_lshl_b32 s3, {SW}, 2\nv_add_u32 v5, s3, v5')
    a('v_xor_b32 v6, v5, v1\nv_and_b32 v6, 15, v6\nv_lshlrev_b32 v6, 4, v6')
    a(f'v_lshlrev_b32 v4, {rowstride_shift}, v5\nv_add_u32 v4, v4, v6')

def x_dma(a, q, ldsbase, tilestride, tag):
    for i in range(4):
        a(f's_add_u32 m0, s51, {ldsbase + i*8192}')
        a(f's_add_u32 s3, s50, {i*tilestride + q*256}')
        a(f'buffer_load_dwordx4 v4, {sX}, s3 offen lds', tag=(tag if i==3 else None))

def w_dma(a, pas, c, ldsbase, tag):
    for e in range(2):
        a(f's_add_u32 m0, s51, {ldsbase + e*8192}')
        a(f's_add_u32 s3, {"s52" if pas==1 else "s53"}, {(128*c + 64*e)*2752}')
        a(f'buffer_load_dwordx4 {"v7" if pas==1 else "v8"}, {sWIN}, s3 offen lds', tag=(tag if e==1 else None))

def gelu(a, acc, n, cs, vm, vA, vB, vRi, t0):
    G = 4
    for b in range(0, n, G):
        for i in range(G): a(f'v_fma_f32 v{acc+b+i}, -v{vm}, v{cs+b+i}, v{acc+b+i}')
        for i in range(G): a(f'v_mul_f32 v{t0+i}, v{acc+b+i}, v{acc+b+i}')
        for i in range(G): a(f'v_fma_f32 v{t0+i}, v{t0+i}, v{vB}, v{vA}')
        for i in range(G): a(f'v_mul_f32 v{t0+i}, v{t0+i}, v{acc+b+i}')
        for i in range(G): a(f'v_exp_f32 v{t0+i}, v{t0+i}')
        for i in range(G): a(f'v_fma_f32 v{t0+i}, v{t0+i}, v{vRi}, v{vRi}')
        for i in range(G): a(f'v_rcp_f32 v{t0+i}, v{t0+i}')
        for i in range(G): a(f'v_mul_f32 v{acc+b+i}, v{acc+b+i}, v{t0+i}')

def p1_gemm(a, multi):
    X, ACC2, ACC1, WF, ID, CS = 128, 96, 112, 64, 80, 48
    a(f's_lshl_b32 s51, {SW}, 10\ns_lshl_b32 s50, s46, 17')
    x_dma_setup(a, 10)
    a('v_lshrrev_b32 v5, 2, v1\nv_and_b32 v5, 4, v5\nv_and_b32 v6, 7, v1\nv_xor_b32 v6, v5, v6')
    a('v_lshrrev_b32 v5, 3, v1\nv_mul_u32_u24 v5, 2752, v5\nv_lshl_add_u32 v8, v6, 4, v5')
    a('s_cmp_eq_u32 s47, 0\ns_cselect_b32 s3, 2, 0\nv_cmp_gt_u32 vcc, s3, v6\nv_mov_b32 v5, 0x40000000\nv_cndmask_b32 v7, v8, v5, vcc')
    a(f's_mul_i32 s3, {SW}, {8*2752}\ns_lshl_b32 s53, s47, 7\ns_add_u32 s53, s53, s3\ns_add_u32 s52, s53, 1344')
    xs = [0, 3*SLOT, 6*SLOT, 0]; w1s = [2*SLOT, 5*SLOT, 8*SLOT, 2*SLOT]; w2s = [3*SLOT, 4*SLOT, 5*SLOT, 6*SLOT]
    for q in range(3):
        x_dma(a, q, xs[q], 32768, None); w_dma(a, 1, q, w1s[q], f'q{q}')
    if multi:
        a(f's_lshl_b32 s3, s46, 8\ns_add_u32 s54, s3, {WS_FLAG}\nv_mov_b32 v9, 0\nbuffer_load_dword v46, v9, {sWS}, s54 offen sc1', tag='epoch')
    a('v_and_b32 v10, 31, v1\nv_lshrrev_b32 v11, 5, v1')
    a('v_and_b32 v5, 0x13, v10\nv_lshrrev_b32 v6, 1, v10\nv_and_b32 v6, 4, v6\nv_or_b32 v5, v5, v6\nv_lshlrev_b32 v6, 1, v10\nv_and_b32 v6, 8, v6\nv_or_b32 v5, v5, v6')
    a(f's_and_b32 s48, {SW}, 3\ns_lshr_b32 s49, {SW}, 2')
    a(f'v_and_b32 v6, 15, v5\nv_xor_b32 v6, v6, v11\ns_lshl_b32 s3, {SW}, 1\nv_xor_b32 v6, s3, v6\nv_lshlrev_b32 v6, 4, v6')
    a('s_lshl_b32 s3, s48, 13\nv_lshl_add_u32 v12, v5, 8, v6\nv_add_u32 v12, s3, v12')
    a('v_and_b32 v5, 15, v1\nv_lshrrev_b32 v6, 2, v5\nv_lshl_add_u32 v6, v11, 3, v6\nv_lshlrev_b32 v13, 7, v6')
    a('v_bfe_u32 v6, v1, 4, 1\nv_lshlrev_b32 v6, 1, v6\nv_bfe_u32 v9, v1, 1, 1\nv_or_b32 v6, v6, v9\ns_lshl_b32 s3, s49, 2\nv_or_b32 v6, s3, v6')
    a('v_bfe_u32 v9, v1, 3, 1\nv_lshlrev_b32 v9, 2, v9\nv_xor_b32 v6, v6, v9\nv_lshl_add_u32 v13, v6, 4, v13')
    a(f'v_and_b32 v6, 1, v1\nv_lshl_add_u32 v13, v6, 3, v13\ns_lshl_b32 s3, {SW}, 11\nv_add_u32 v13, s3, v13')
    a('v_lshlrev_b32 v5, 2, v11\nv_sub_u32 v5, v10, v5\nv_mov_b32 v6, 0x3f80\nv_mov_b32 v9, 0x3f800000')
    for u in range(2):
        for jj in range(4):
            off = 16*u + (0,2,8,10)[jj]
            a(f'v_cmp_eq_u32 vcc, {off}, v5\nv_cndmask_b32 v{ID+4*u+jj}, 0, v6, vcc\nv_cmp_eq_u32 vcc, {off+1}, v5\nv_cndmask_b32 v{ID+4*u+jj}, v{ID+4*u+jj}, v9, vcc')
    a('s_mov_b32 s55, 0x3f803f80')
    for r in (14,15,16,17,18,19): a(f'v_mov_b32 v{r}, 0')
    def quarter(pas, q, xb, wb, acc, first):
        a(f'v_add_u32 v21, {wb}, v13')
        if pas==1:
            a(f'v_add_u32 v20, {xb}, v12')
            for js in range(8):
                a(f'v_xor_b32 v{22+(js&1)}, {32*js}, v20\nds_read_b128 {vr(X+4*(8*q+js))}, v{22+(js&1)}', tag=f'x{q}_{js}')
        def rd(js):
            f = WF+4*(js&3)
            a(f'v_xor_b32 v{24+(js&1)}, {2048*js}, v21')
            op = 'ds_read_b64' if 'notr' in EXP else 'ds_read_b64_tr_b16'
            if 'nord' in EXP: a(f's_nop 0', tag=f'w{pas}{q}_{js}')
            else: a(f'{op} {vr(f,2)}, v{24+(js&1)}\n{op} {vr(f+2,2)}, v{24+(js&1)} offset:512', tag=f'w{pas}{q}_{js}')
        for js in range(3): rd(js)
        for js in range(8):
            if js+3 < 8: rd(js+3)
            a.wait(lgkm=f'w{pas}{q}_{js}')
            f = WF+4*(js&3)
            a(f'v_mfma_f32_32x32x16_bf16 {vr(acc,16)}, {vr(f)}, {vr(X+4*(8*q+js))}, {"0" if first and js==0 else vr(acc,16)}')
            if js in (0,4) and 'nodot' not in EXP:
                for r in range(4): a(f'v_dot2c_f32_bf16 v{17+pas}, s55, v{f+r}')
        if pas==1 and 'nodot' not in EXP:
            for js in range(4):
                for r in range(4):
                    x = X+4*(8*q+js)+r
                    a(f'v_dot2c_f32_bf16 v{14+(r&1)}, s55, v{x}\nv_dot2c_f32_bf16 v{16+0*(r&1)}, v{x}, v{x}')
    for q in range(4):
        a.wait(vm=f'q{q}'); a('s_barrier')
        if q==0: stamp(a,1)
        if q==3: stamp(a,2)
        if q==1: x_dma(a, 3, xs[3], 32768, None); w_dma(a, 1, 3, w1s[3], 'q3')
        if q==2:
            for c in range(3): w_dma(a, 2, c, w2s[c], f'r{c}')
        if q==3: w_dma(a, 2, 3, w2s[3], 'r3')
        quarter(1, q, xs[q], w1s[q], ACC2, q==0)
    a('v_add_f32 v14, v14, v15\nv_mov_b32 v15, v16')
    a(f's_lshl_b32 s3, s48, 10\ns_lshl_b32 s4, s49, 4\ns_add_u32 s3, s3, s4\ns_add_u32 s3, s3, {LST}')
    a('v_lshlrev_b32 v5, 5, v10\nv_lshl_add_u32 v5, v11, 3, v5\nv_add_u32 v26, s3, v5\nds_write_b64 v26, v[14:15]')
    a(f's_lshl_b32 s3, s49, 10\ns_lshl_b32 s4, s48, 3\ns_add_u32 s3, s3, s4\ns_add_u32 s3, s3, {LCS}')
    a('v_lshlrev_b32 v5, 5, v10\nv_lshl_add_u32 v5, v11, 2, v5\nv_add_u32 v27, s3, v5\nds_write_b32 v27, v18')
    for q in range(4):
        a.wait(vm=f'r{q}', lgkm=0); a('s_barrier')
        quarter(2, q, None, w2s[q], ACC1, q==0)
    stamp(a,3)
    a('ds_write_b32 v27, v19 offset:2048')
    a(f's_lshl_b32 s3, s48, 10\ns_add_u32 s3, s3, {LST}\nv_lshlrev_b32 v5, 5, v10\nv_add_u32 v5, s3, v5')
    a('ds_read_b128 v[28:31], v5\nds_read_b128 v[32:35], v5 offset:16')
    a.wait(lgkm=0); a('s_barrier')
    a('v_add_f32 v28, v28, v30\nv_add_f32 v29, v29, v31\nv_add_f32 v32, v32, v34\nv_add_f32 v33, v33, v35\nv_add_f32 v28, v28, v32\nv_add_f32 v29, v29, v33')
    a(f'v_mul_f32 v14, {hx(1/512)}, v28\nv_mul_f32 v29, {hx(1/512)}, v29\nv_fma_f32 v29, -v14, v14, v29\nv_add_f32 v29, {hx(1e-5)}, v29')
    a(f'v_rsq_f32 v15, v29\nv_sqrt_f32 v16, v29')
    a(f'v_mul_f32 v17, {hx(C0)}, v15\nv_mul_f32 v18, v15, v15\nv_mul_f32 v18, v18, v15\nv_mul_f32 v18, {hx(C1)}, v18')
    def cs_final(pas):
        a(f's_lshl_b32 s3, s49, 10\ns_add_u32 s3, s3, {LCS + (pas-1)*2048}\nv_lshlrev_b32 v5, 5, v10\nv_lshl_add_u32 v5, v11, 4, v5\nv_add_u32 v5, s3, v5')
        a('ds_read_b128 v[28:31], v5'); a.wait(lgkm=0)
        a('v_add_f32 v28, v28, v29\nv_add_f32 v30, v30, v31\nv_add_f32 v28, v28, v30\nv_mov_b32 v29, v28\nv_permlane32_swap_b32 v28, v29\nv_add_f32 v28, v28, v29')
        a(f's_lshl_b32 s3, {SW}, 7\ns_add_u32 s3, s3, {LCF + (pas-1)*1024}\nv_lshl_add_u32 v5, v10, 2, s3\nds_write_b32 v5, v28')
        a('v_lshl_add_u32 v5, v11, 4, s3'); a.wait(lgkm=0)
        for g in range(4): a(f'ds_read_b128 {vr(CS+4*g)}, v5 offset:{32*g}')
        a.wait(lgkm=0)
    cs_final(1)
    gelu(a, ACC2, 16, CS, 14, 17, 18, 16, 28)
    a(f'v_add_f32 v28, v{ACC2}, v{ACC2+1}\nv_mul_f32 v29, v{ACC2}, v{ACC2}\nv_fmac_f32 v29, v{ACC2+1}, v{ACC2+1}')
    for v in range(2,16): a(f'v_add_f32 v28, v28, v{ACC2+v}\nv_fmac_f32 v29, v{ACC2+v}, v{ACC2+v}')
    a('v_mov_b32 v30, v28\nv_mov_b32 v31, v29\nv_permlane32_swap_b32 v28, v30\nv_permlane32_swap_b32 v29, v31\nv_add_f32 v28, v28, v30\nv_add_f32 v29, v29, v31')
    a(f's_lshl_b32 s3, s48, 9\ns_add_u32 s3, s3, {LZ}\nv_lshl_add_u32 v5, v10, 4, s3\ns_lshl_b32 s4, s49, 3\nv_add_u32 v6, s4, v5\nds_write_b64 v6, v[28:29]')
    if multi:
        a.wait(vm='epoch')
        a(f'v_readfirstlane_b32 s3, v46\ns_mul_i32 s3, s3, 0x9E3779B1\ns_add_u32 {SN}, s3, 0x7F4A7C15')
    a.wait(lgkm=0); a('s_barrier')
    a('ds_read_b128 v[28:31], v5'); a.wait(lgkm=0)
    a(f'v_add_f32 v28, v28, v30\nv_add_f32 v30, v29, v31\nv_mov_b32 v29, {SN}\nv_mov_b32 v31, {SN}')
    a(f's_mul_i32 s56, s46, {11*2048}\ns_lshl_b32 s3, s48, 9\ns_add_u32 s56, s56, s3\ns_add_u32 s56, s56, {WS_STAT}')
    a('s_lshl_b32 s3, s47, 11\ns_add_u32 s3, s3, s56\ns_lshl_b32 s4, s49, 30\ns_add_u32 s3, s3, s4')
    a('v_lshlrev_b32 v5, 4, v10\nv_lshl_add_u32 v6, v11, 30, v5')
    a(f'buffer_store_dwordx4 v[28:31], v6, {sWS}, s3 offen sc1')
    stamp(a,4)
    cs_final(2)
    gelu(a, ACC1, 16, CS, 14, 17, 18, 16, 28)
    for u in range(2):
        for jj in range(4): a(f'v_cvt_pk_bf16_f32 v{WF+4*u+jj}, v{ACC1+8*u+2*jj}, v{ACC1+8*u+2*jj+1}')
    a(f'v_mfma_f32_32x32x16_bf16 {vr(ACC1,16)}, {vr(WF)}, {vr(ID)}, 0\nv_mfma_f32_32x32x16_bf16 {vr(ACC1,16)}, {vr(WF+4)}, {vr(ID+4)}, {vr(ACC1,16)}')
    a(f's_lshl_b32 s3, s46, 2\ns_add_u32 s3, s3, s48\ns_mul_i32 s57, s3, {32*1408}\ns_lshl_b32 s3, s47, 7\ns_add_u32 s57, s57, s3\ns_lshl_b32 s3, s49, 6\ns_add_u32 s57, s57, s3')
    a(f'v_mul_u32_u24 v5, {8*1408}, v11\nv_lshl_add_u32 v5, v10, 1, v5')
    for v in range(16):
        row = 16*(v>>3) + 4*((v>>2)&1) + (v&3)
        a(f's_add_u32 s3, s57, {WS_Z1 + row*1408}\nbuffer_store_short_d16_hi v{ACC1+v}, v5, {sWS}, s3 offen sc1')
    a('v_lshlrev_b32 v5, 4, v10\nv_lshl_add_u32 v6, v11, 11, v5\ns_mov_b32 s58, 0')
    P = X
    stamp(a,5)
    a('L_p1_poll:')
    for i in range(6):
        a(f's_add_u32 s3, s56, {i*4096}\nbuffer_load_dwordx4 {vr(P+4*i)}, {"v6" if i<5 else "v5"}, {sWS}, s3 offen sc1')
    a('s_waitcnt vmcnt(0)')
    a(f'v_xor_b32 v28, {SN}, v{P+1}')
    for i in range(1,12): a(f'v_xor_b32 v29, {SN}, v{P+1+2*i}\nv_or_b32 v28, v28, v29')
    a('v_cmp_ne_u32 vcc, 0, v28\ns_add_u32 s58, s58, 1\ns_cmp_gt_u32 s58, 4000\ns_cbranch_scc1 L_p1_got\ns_cbranch_vccnz L_p1_poll')
    a('L_p1_got:'); stamp(a,6)
    a(f'v_cmp_eq_u32 vcc, 0, v11\nv_cndmask_b32 v28, 0, v{P+20}, vcc\nv_cndmask_b32 v29, 0, v{P+22}, vcc')
    for i in range(5): a(f'v_add_f32 v28, v28, v{P+4*i}\nv_add_f32 v29, v29, v{P+4*i+2}')
    a('v_mov_b32 v30, v28\nv_mov_b32 v31, v29\nv_permlane32_swap_b32 v28, v30\nv_permlane32_swap_b32 v29, v31\nv_add_f32 v28, v28, v30\nv_add_f32 v29, v29, v31')
    a(f'v_mul_f32 v28, {hx(1/688)}, v28\nv_mul_f32 v29, {hx(1/688)}, v29\nv_fma_f32 v29, -v28, v28, v29\nv_add_f32 v29, {hx(1e-5)}, v29\nv_rsq_f32 v29, v29\nv_mul_f32 v28, v28, v29')
    for v in range(16): a(f'v_fma_f32 v{ACC2+v}, v{ACC2+v}, v29, -v28')
    for u in range(2):
        for jj in range(4): a(f'v_cvt_pk_bf16_f32 v{WF+4*u+jj}, v{ACC2+8*u+2*jj}, v{ACC2+8*u+2*jj+1}')
    a(f'v_mfma_f32_32x32x16_bf16 {vr(ACC2,16)}, {vr(WF)}, {vr(ID)}, 0\nv_mfma_f32_32x32x16_bf16 {vr(ACC2,16)}, {vr(WF+4)}, {vr(ID+4)}, {vr(ACC2,16)}')
    a(f's_lshl_b32 s3, s47, 2\ns_lshl_b32 s4, s49, 1\ns_add_u32 s3, s3, s4\ns_lshl_b32 s3, s3, 16\ns_lshl_b32 s4, s46, 2\ns_add_u32 s4, s4, s48\ns_lshl_b32 s4, s4, 10\ns_add_u32 s3, s3, s4\ns_add_u32 s3, s3, {WS_Z2}')
    a('v_lshrrev_b32 v5, 4, v10\nv_lshlrev_b32 v5, 16, v5\nv_and_b32 v6, 15, v1\nv_lshl_add_u32 v6, v11, 4, v6\nv_lshl_add_u32 v5, v6, 4, v5')
    s_perm = 's59'
    a(f's_mov_b32 {s_perm}, 0x07060302')
    for e in range(2):
        for jj in range(4): a(f'v_perm_b32 v{WF+4*e+jj}, v{ACC2+8*e+2*jj+1}, v{ACC2+8*e+2*jj}, {s_perm}')
        a(f'buffer_store_dwordx4 {vr(WF+4*e)}, v5, {sWS}, s3 offen offset:{512*e} sc1')
    if multi:
        a(f's_cmp_lg_u32 s47, 0\ns_cbranch_scc1 L_p1_noep\ns_cmp_lg_u32 {SW}, 0\ns_cbranch_scc1 L_p1_noep')
        a(f'v_mov_b32 v6, {SN}\nv_lshlrev_b32 v9, 30, v1\nv_min_u32 v5, 1, v1\nv_lshlrev_b32 v5, 30, v5\nbuffer_store_dword v6, v5, {sWS}, s54 offen sc1')
        a('L_p1_noep:')

def p1_flag(a, role_sgpr_expr, lab):
    a('s_waitcnt vmcnt(0)\ns_barrier')
    a(f's_cmp_lg_u32 {SW}, 0\ns_cbranch_scc1 {lab}')
    a(f'{role_sgpr_expr}\ns_lshl_b32 s3, s3, 8\ns_lshl_b32 s4, s46, 2\ns_add_u32 s3, s3, s4\ns_add_u32 s3, s3, {WS_F1}')
    publish(a, 4, 4096, 's3')
    a(f'{lab}:')

def p1_dft(a):
    ACC_C, ACC_S, ST, FR, XF, G = 96, 112, 128, 160, 192, 64
    a(f's_lshl_b32 s51, {SW}, 10\ns_lshl_b32 s50, s46, 12')
    x_dma_setup(a, 16)
    for q in (0,2,1,3): x_dma(a, q, q*32768, 1024, f'dq{q}')
    a(f's_and_b32 s48, {SW}, 3\ns_lshr_b32 s49, {SW}, 2')
    a('v_and_b32 v10, 31, v1\nv_lshrrev_b32 v11, 5, v1')
    a('s_lshl_b32 s52, s47, 1\ns_add_u32 s52, s52, s49')
    a('s_lshl_b32 s53, s46, 2\ns_add_u32 s53, s53, s48')
    a('s_lshl_b32 s3, s52, 5\ns_add_u32 s3, s3, 1\nv_add_u32 v14, s3, v10')
    a('v_and_b32 v6, 15, v10\nv_xor_b32 v6, v6, v11\nv_lshlrev_b32 v6, 4, v6\nv_lshl_add_u32 v12, v10, 8, v6\ns_lshl_b32 s3, s48, 13\nv_add_u32 v12, s3, v12')
    a('s_lshl_b32 s3, s49, 16\nv_add_u32 v12, s3, v12\nv_xor_b32 v13, 0x10000, v12')
    a('s_lshl_b32 s3, s49, 9\ns_add_u32 s3, s3, 1\nv_lshl_add_u32 v5, v11, 4, s3\nv_mul_u32_u24 v5, v5, v14\nv_lshlrev_b32 v6, 1, v14\nv_lshlrev_b32 v7, 5, v14')
    for i in range(8):
        a(f'v_and_b32 v8, 1023, v5\nv_cvt_f32_u32 v8, v8\nv_mul_f32 v8, {hx(1/1024)}, v8\nv_cos_f32 v{ST+i}, v8\nv_sin_f32 v{ST+16+i}, v8')
        a(f'v_sub_u32 v9, v5, v7\nv_and_b32 v9, 1023, v9\nv_cvt_f32_u32 v9, v9\nv_mul_f32 v9, {hx(1/1024)}, v9\nv_cos_f32 v{ST+8+i}, v9\nv_sin_f32 v{ST+24+i}, v9')
        if i<7: a('v_add_u32 v5, v5, v6')
    a(f'v_and_b32 v8, 31, v14\nv_cvt_f32_u32 v8, v8\nv_mul_f32 v8, {hx(1/32)}, v8\nv_cos_f32 v15, v8\nv_add_f32 v15, v15, v15')
    a('v_and_b32 v16, 1, v14\nv_mul_u32_u24 v16, 0x8000, v16\nv_lshl_or_b32 v16, v16, 16, v16')
    a('v_lshlrev_b32 v5, 8, v11\nv_add_u32 v5, s53, v5\nv_mul_u32_u24 v5, v5, v10\nv_lshlrev_b32 v6, 6, v10')
    for u in range(2):
        for jj in range(4):
            for e in range(2):
                i = 2*jj+e; aoff = 8*(2*u+(i>>2)) + (i&3)
                a(f'v_mad_u32_u24 v8, v6, {aoff}, v5\nv_and_b32 v8, 2047, v8\nv_cvt_f32_u32 v8, v8\nv_mul_f32 v8, {hx(1/2048)}, v8\nv_cos_f32 v{20+e}, v8\nv_sin_f32 v{22+e}, v8')
            a(f'v_cvt_pk_bf16_f32 v{G+4*u+jj}, v20, v21\nv_cvt_pk_bf16_f32 v{G+8+4*u+jj}, v22, v23\nv_cvt_pk_bf16_f32 v{G+16+4*u+jj}, -v22, -v23')
    a('s_mov_b32 s55, 0x3f803f80\nv_mov_b32 v17, 0\nv_mov_b32 v18, 0\nv_mov_b32 v19, 0')
    cur, prev = 0, 8
    def rd(j):
        b = XF + 8*(j&3); o = 32768*(j>>3)
        a(f'v_xor_b32 v24, {32*(j&7)}, v12\nv_xor_b32 v25, {32*(j&7)}, v13')
        a(f'ds_read_b128 {vr(b)}, v24 offset:{o}\nds_read_b128 {vr(b+4)}, v25 offset:{o}', tag=f'dx{j}')
    for j in range(16):
        if j in (0,8):
            if j==0: stamp(a,4)
            a.wait(vm='dq2' if j==0 else 'dq3'); a('s_barrier'); stamp(a, 1 if j==0 else 2)
            rd(j); rd(j+1)
        if (j&7) < 6: rd(j+2)
        f = FR + 16*(j&1)
        for jj in range(4):
            a(f'v_cvt_pk_bf16_f32 v{f+jj}, v{ST+cur+2*jj}, v{ST+cur+2*jj+1}\nv_cvt_pk_bf16_f32 v{f+4+jj}, v{ST+16+cur+2*jj}, v{ST+16+cur+2*jj+1}')
        for jj in range(8): a(f'v_xor_b32 v{f+8+jj}, v16, v{f+jj}')
        b = XF + 8*(j&3)
        a.wait(lgkm=f'dx{j}')
        z = '0' if j==0 else None
        a(f'v_mfma_f32_32x32x16_bf16 {vr(ACC_C,16)}, {vr(b)}, {vr(f)}, {z or vr(ACC_C,16)}')
        a(f'v_mfma_f32_32x32x16_bf16 {vr(ACC_S,16)}, {vr(b)}, {vr(f+4)}, {z or vr(ACC_S,16)}')
        if j<15:
            for i in range(8): a(f'v_fma_f32 v{ST+prev+i}, v15, v{ST+cur+i}, -v{ST+prev+i}')
        a(f'v_mfma_f32_32x32x16_bf16 {vr(ACC_C,16)}, {vr(b+4)}, {vr(f+8)}, {vr(ACC_C,16)}')
        if j<15:
            for i in range(8): a(f'v_fma_f32 v{ST+16+prev+i}, v15, v{ST+16+cur+i}, -v{ST+16+prev+i}')
        a(f'v_mfma_f32_32x32x16_bf16 {vr(ACC_S,16)}, {vr(b+4)}, {vr(f+12)}, {vr(ACC_S,16)}')
        for r in range(4): a(f'v_dot2c_f32_bf16 v{17+(r&1)}, s55, v{b+r}\nv_dot2c_f32_bf16 v19, v{b+r}, v{b+r}')
        cur, prev = prev, cur
    stamp(a,3)
    a('v_add_f32 v18, v17, v18')
    a(f's_lshl_b32 s3, s48, 10\ns_add_u32 s4, s3, {LST}\ns_lshl_b32 s3, s49, 4\ns_add_u32 s3, s3, s4')
    a('v_lshlrev_b32 v5, 5, v10\nv_lshl_add_u32 v6, v11, 3, v5\nv_add_u32 v6, s3, v6\nds_write_b64 v6, v[18:19]\nv_add_u32 v5, s4, v5')
    a.wait(lgkm=0); a('s_barrier')
    a('ds_read_b128 v[28:31], v5\nds_read_b128 v[32:35], v5 offset:16'); a.wait(lgkm=0)
    a('v_add_f32 v28, v28, v30\nv_add_f32 v29, v29, v31\nv_add_f32 v32, v32, v34\nv_add_f32 v33, v33, v35\nv_add_f32 v28, v28, v32\nv_add_f32 v29, v29, v33')
    a(f'v_mul_f32 v28, {hx(1/512)}, v28\nv_mul_f32 v29, {hx(1/512)}, v29\nv_fma_f32 v29, -v28, v28, v29\nv_add_f32 v29, {hx(1e-5)}, v29\nv_rsq_f32 v29, v29')
    a(f's_lshl_b32 s3, {SW}, 7\ns_add_u32 s3, s3, {LRR}\nv_lshl_add_u32 v5, v10, 2, s3\nds_write_b32 v5, v29\nv_lshl_add_u32 v5, v11, 4, s3')
    a.wait(lgkm=0)
    for g in range(4): a(f'ds_read_b128 {vr(48+4*g)}, v5 offset:{32*g}')
    a.wait(lgkm=0)
    for v in range(16): a(f'v_mul_f32 v{ACC_C+v}, v{ACC_C+v}, v{48+v}\nv_mul_f32 v{ACC_S+v}, -v{ACC_S+v}, v{48+v}')
    for u in range(2):
        for jj in range(4):
            a(f'v_cvt_pk_bf16_f32 v{FR+4*u+jj}, v{ACC_C+8*u+2*jj}, v{ACC_C+8*u+2*jj+1}\nv_cvt_pk_bf16_f32 v{FR+8+4*u+jj}, v{ACC_S+8*u+2*jj}, v{ACC_S+8*u+2*jj+1}')
    TR, TI = 128, 144
    for u in range(2):
        a(f'v_mfma_f32_32x32x16_bf16 {vr(TR,16)}, {vr(G+4*u)}, {vr(FR+4*u)}, {"0" if u==0 else vr(TR,16)}')
        a(f'v_mfma_f32_32x32x16_bf16 {vr(TI,16)}, {vr(G+4*u)}, {vr(FR+8+4*u)}, {"0" if u==0 else vr(TI,16)}')
    for u in range(2):
        a(f'v_mfma_f32_32x32x16_bf16 {vr(TR,16)}, {vr(G+8+4*u)}, {vr(FR+8+4*u)}, {vr(TR,16)}')
        a(f'v_mfma_f32_32x32x16_bf16 {vr(TI,16)}, {vr(G+16+4*u)}, {vr(FR+4*u)}, {vr(TI,16)}')
    a(f's_lshl_b32 s3, s52, 13\ns_lshl_b32 s4, s53, 7\ns_add_u32 s56, s3, s4')
    a('v_lshlrev_b32 v5, 18, v11\nv_lshl_add_u32 v5, v10, 2, v5')
    for v in range(16):
        p = 8*(v>>2) + (v&3)
        a(f'v_cvt_pk_bf16_f32 v{FR+v}, v{TR+v}, v{TI+v}\ns_add_u32 s3, s56, {WS_T + p*65536}\nbuffer_store_dword v{FR+v}, v5, {sWS}, s3 offen sc1')

def p1_dispatch(a, multi, after):
    a('s_and_b32 s4, s2, 7\ns_lshr_b32 s5, s2, 3\ns_and_b32 s6, s4, 1')
    a('s_mul_i32 s7, s6, 4\ns_sub_u32 s7, 24, s7\ns_cmp_lt_u32 s5, s7\ns_cbranch_scc1 L_p1_gemm')
    a(f's_sub_u32 s5, s5, s7\ns_cmp_lt_u32 s5, 8\ns_cbranch_scc0 {after}')
    a('s_lshl_b32 s46, s4, 1\ns_and_b32 s3, s5, 1\ns_add_u32 s46, s46, s3\ns_lshr_b32 s47, s5, 1')
    p1_dft(a)
    if not multi: p1_flag(a, 's_add_u32 s3, s47, 11', 'L_p1_f1')
    a(f's_branch {after}')
    a('L_p1_gemm:')
    a('s_lshr_b32 s46, s4, 1\ns_lshl_b32 s46, s46, 2\ns_and_b32 s3, s5, 3\ns_add_u32 s46, s46, s3\ns_lshr_b32 s47, s5, 2\ns_mul_i32 s3, s6, 6\ns_add_u32 s47, s47, s3')
    p1_gemm(a, multi)
    if not multi: p1_flag(a, 's_mov_b32 s3, s47', 'L_p1_f2')
```

```python
from common import *
LZ1, LT, LP = 131072, 147456, 155648
AR, BR, ACC = 128, 96, 64

def p2_ids(a):
    a('s_and_b32 s4, s2, 7\ns_lshr_b32 s5, s2, 3\ns_and_b32 s6, s4, 1\ns_lshr_b32 s7, s5, 3')
    a('s_lshr_b32 s46, s4, 1\ns_lshl_b32 s46, s46, 3\ns_and_b32 s50, s5, 7\ns_add_u32 s46, s46, s50')
    a('s_mul_i32 s47, s6, 21\ns_mul_i32 s3, s7, 5\ns_add_u32 s47, s47, s3\ns_cmp_eq_u32 s7, 3\ns_cselect_b32 s3, s6, 0\ns_add_u32 s47, s47, s3')
    a('s_add_u32 s3, s7, s6\ns_cmp_ge_u32 s3, 3\ns_cselect_b32 s48, 6, 5')
    a('s_lshl_b32 s49, s4, 2\ns_add_u32 s49, s49, s7')

def a_setup(a):
    a('v_lshrrev_b32 v7, 3, v1\nv_xor_b32 v8, v7, v1\nv_and_b32 v8, 7, v8\nv_lshlrev_b32 v8, 4, v8\nv_lshl_add_u32 v4, v7, 18, v8')
    a(f's_lshl_b32 s51, s46, 13\ns_lshl_b32 s3, {SW}, 9\ns_add_u32 s51, s51, s3\ns_lshl_b32 s52, {SW}, 14')
    a('v_and_b32 v7, 15, v1\nv_lshrrev_b32 v8, 4, v1\nv_and_b32 v9, 7, v1\nv_xor_b32 v8, v8, v9\nv_lshlrev_b32 v8, 4, v8\nv_lshl_add_u32 v5, v7, 7, v8')
    a('v_add_u32 v5, s52, v5\nv_xor_b32 v6, 64, v5')

def a_dma(a, rho, tag):
    for n in range(8):
        a(f's_add_u32 m0, s52, {(rho&1)*8192 + n*1024}')
        a(f's_add_u32 s3, s51, {(8*(n&3)*64 + (n>>2))*4096 + rho*128}')
        a(f'buffer_load_dwordx4 v4, {sWSP}, s3 offen lds', tag=(tag if n==7 else None))

def a_read(a, rho, tag):
    for st in range(2):
        for tt in range(4):
            a(f'ds_read_b128 {vr(AR+4*((2*rho+st)*4+tt))}, v{5+st} offset:{(rho&1)*8192 + 2048*tt}', tag=(tag if (st,tt)==(1,3) else None))

def b_load(a, e, step, tag):
    if e<5: a(f's_add_u32 s3, s53, {65536*e + 1024*step}')
    else:   a(f's_add_u32 s3, s54, {1024*step}')
    a(f'buffer_load_dwordx4 {vr(BR+4*step)}, v10, {sWS}, s3 offen', tag=tag)

def fft_loads(a):
    a(f's_lshl_b32 s3, {SW}, 10\ns_add_u32 m0, s3, {LT}\ns_lshl_b32 s4, s49, 16\ns_add_u32 s3, s3, s4\ns_lshl_b32 s4, s50, 13\ns_add_u32 s3, s3, s4\ns_add_u32 s3, s3, {WS_T}')
    a(f'buffer_load_dwordx4 v10, {sWS}, s3 offen lds', tag='T')

def fft_w_loads(a):
    a(f's_and_b32 s55, {SW}, 1\ns_lshr_b32 s56, {SW}, 1\nv_and_b32 v12, 15, v1\nv_lshrrev_b32 v13, 4, v1')
    a(f'v_mul_u32_u24 v7, {4*32*514}, v13\nv_lshl_add_u32 v7, v12, 1, v7')
    a('s_lshl_b32 s3, s56, 9\ns_add_u32 s3, s3, s49\ns_mul_i32 s3, s3, 514\ns_lshl_b32 s4, s50, 1\ns_add_u32 s4, s4, s55\ns_lshl_b32 s57, s4, 4\ns_add_u32 s57, s57, 1\ns_lshl_b32 s4, s57, 1\ns_add_u32 s3, s3, s4')
    for v in range(4):
        a(f's_add_u32 s4, s3, {32*v*514}\nbuffer_load_ushort v{88+v}, v7, {sWR}, s4 offen\nbuffer_load_ushort v{92+v}, v7, {sWI}, s4 offen', tag=('W' if v==3 else None))

def fft_consts(a):
    FA, FB = 32, 48
    a('s_lshl_b32 s3, s56, 4\nv_add_u32 v7, s3, v12\nv_lshlrev_b32 v8, 2, v13\nv_mul_u32_u24 v8, v8, v7')
    for y in range(4):
        for j in range(4):
            a(f'v_mad_u32_u24 v9, v7, {16*y+j}, v8\nv_and_b32 v9, 63, v9\nv_cvt_f32_u32 v9, v9\nv_mul_f32 v9, {hx(1/64)}, v9\nv_cos_f32 v16, v9\nv_sin_f32 v17, v9')
            a(f'v_cvt_pk_bf16_f32 v{FA+4*y+j}, v16, v17\nv_cvt_pk_bf16_f32 v{FB+4*y+j}, -v17, v16')
    a(f'v_add_u32 v9, s57, v12\nv_cmp_eq_u32 vcc, 0x100, v9\nv_mov_b32 v14, {hx(2.0**-19)}\nv_mov_b32 v9, {hx(2.0**-20)}\nv_cndmask_b32 v14, v14, v9, vcc')

def fft_body(a):
    FA, FB, TF, D, W = 32, 48, 64, 80, 88
    a(f's_lshl_b32 s3, s55, 6\ns_add_u32 s3, s3, {LT}\nv_lshlrev_b32 v7, 9, v13\nv_lshl_add_u32 v7, v12, 2, v7\nv_add_u32 v7, s3, v7')
    a.wait(vm='T'); a('s_barrier')
    for y in range(4):
        for j in range(4): a(f'ds_read_b32 v{TF+4*y+j}, v7 offset:{2048*y+128*j}', tag=(f'tf{y}' if j==3 else None))
    for y in range(4):
        a.wait(lgkm=f'tf{y}')
        a(f'v_mfma_f32_16x16x32_bf16 {vr(D)}, {vr(FA+4*y)}, {vr(TF+4*y)}, {"0" if y==0 else vr(D)}')
        a(f'v_mfma_f32_16x16x32_bf16 {vr(D+4)}, {vr(FB+4*y)}, {vr(TF+4*y)}, {"0" if y==0 else vr(D+4)}')
    a.wait(vm='W')
    for v in range(8): a(f'v_lshlrev_b32 v{W+v}, 16, v{W+v}\nv_mul_f32 v{W+v}, v14, v{W+v}')
    for r in range(16): a(f'v_xor_b32 v{FA+r}, 0x80000000, v{FA+r}\nv_xor_b32 v{FB+r}, 0x8000, v{FB+r}')
    for v in range(4):
        a(f'v_mul_f32 v16, v{D+v}, v{W+v}\nv_mul_f32 v17, v{D+v}, v{W+4+v}\nv_fma_f32 v16, -v{D+4+v}, v{W+4+v}, v16\nv_fma_f32 v17, v{D+4+v}, v{W+v}, v17\nv_cvt_pk_bf16_f32 v{20+v}, v16, v17')
    a(f's_lshl_b32 s3, s55, 12\ns_add_u32 s3, s3, {LP}\nv_add_u32 v7, s3, v10\ns_lshl_b32 s3, s56, 10\nv_add_u32 v8, s3, v7\nds_write_b128 v8, v[20:23]')
    a.wait(lgkm=0); a('s_barrier')
    for y in range(4): a(f'ds_read_b128 {vr(TF+4*y)}, v7 offset:{1024*y}', tag=f'pf{y}')
    for y in range(4):
        a.wait(lgkm=f'pf{y}')
        a(f'v_mfma_f32_16x16x32_bf16 {vr(D)}, {vr(TF+4*y)}, {vr(FA+4*y)}, {"0" if y==0 else vr(D)}')
        a(f'v_mfma_f32_16x16x32_bf16 {vr(D+4)}, {vr(TF+4*y)}, {vr(FB+4*y)}, {"0" if y==0 else vr(D+4)}')
    a('s_lshl_b32 s3, s55, 1\nv_lshrrev_b32 v7, 1, v13\nv_add_u32 v7, s3, v7\nv_and_b32 v8, 7, v12\nv_xor_b32 v7, v7, v8\nv_lshlrev_b32 v7, 4, v7')
    a(f'v_and_b32 v8, 1, v13\nv_lshl_add_u32 v7, v8, 3, v7\nv_lshl_add_u32 v7, v12, 7, v7\ns_lshl_b32 s3, s56, 11\ns_add_u32 s3, s3, {LT}\nv_add_u32 v7, s3, v7\nv_xor_b32 v8, 64, v7')
    a(f'v_cvt_pk_bf16_f32 v16, v{D}, v{D+1}\nv_cvt_pk_bf16_f32 v17, v{D+2}, v{D+3}\nv_cvt_pk_bf16_f32 v18, v{D+4}, v{D+5}\nv_cvt_pk_bf16_f32 v19, v{D+6}, v{D+7}')
    a('ds_write_b64 v7, v[16:17]\nds_write_b64 v8, v[18:19]')
    a(f'v_lshrrev_b32 v7, 3, v1\nv_xor_b32 v8, v7, v1\nv_and_b32 v8, 7, v8\nv_lshlrev_b32 v8, 4, v8\nv_lshl_add_u32 v8, v7, 7, v8\ns_lshl_b32 s3, {SW}, 10\ns_add_u32 s3, s3, {LT}\nv_add_u32 v8, s3, v8')
    a.wait(lgkm=0); a('s_barrier')
    a('ds_read_b128 v[16:19], v8')
    a('v_and_b32 v9, 7, v1\nv_lshlrev_b32 v9, 4, v9\nv_lshl_add_u32 v9, v7, 15, v9')
    a(f's_lshl_b32 s3, {SW}, 18\ns_lshl_b32 s4, s49, 10\ns_add_u32 s3, s3, s4\ns_lshl_b32 s4, s50, 7\ns_add_u32 s3, s3, s4\ns_add_u32 s3, s3, {WS_U}')
    a.wait(lgkm=0)
    a(f'buffer_store_dwordx4 v[16:19], v9, {sWS}, s3 offen sc1', tag='Ust')

def z1_loads(a):
    a(f'v_lshrrev_b32 v7, 4, v1\ns_lshl_b32 s3, {SW}, 2\nv_add_u32 v7, s3, v7\nv_xor_b32 v8, v7, v1\nv_and_b32 v8, 15, v8')
    a(f'v_mul_u32_u24 v7, {64*1408}, v7\nv_lshl_add_u32 v7, v8, 4, v7\ns_lshl_b32 s3, s48, 1\nv_cmp_gt_u32 vcc, s3, v8\nv_mov_b32 v8, 0x40000000\nv_cndmask_b32 v7, v8, v7, vcc')
    a(f's_mul_i32 s3, s46, {2*1408}\ns_lshl_b32 s4, s47, 5\ns_add_u32 s3, s3, s4\ns_lshl_b32 s4, {SW}, 10')
    for e in range(2):
        a(f's_add_u32 m0, s4, {LZ1 + e*8192}\ns_add_u32 s5, s3, {WS_Z1 + e*1408}\nbuffer_load_dwordx4 v7, {sWS}, s5 offen lds', tag=('Z1' if e==1 else None))

def red_setup(a):
    a(f's_and_b32 s58, {SW}, 3\ns_lshr_b32 s59, {SW}, 2')
    a('v_and_b32 v7, 31, v1\ns_lshl_b32 s3, s59, 5\nv_add_u32 v7, s3, v7\nv_lshlrev_b32 v7, 4, v7\nv_lshrrev_b32 v8, 5, v1\nv_lshl_add_u32 v7, v8, 14, v7\ns_lshl_b32 s3, s58, 10\nv_add_u32 v32, s3, v7')
    a(f's_lshl_b32 s3, {SW}, 12\nv_add_u32 v33, s3, v10')
    a('v_and_b32 v7, 15, v1\nv_xor_b32 v9, s59, v7\nv_lshlrev_b32 v9, 4, v9\nv_lshl_add_u32 v9, v7, 8, v9\nv_bfe_u32 v16, v1, 4, 1\nv_lshl_add_u32 v9, v16, 3, v9\nv_lshl_add_u32 v9, v8, 2, v9')
    a(f's_lshl_b32 s3, s58, 12\ns_add_u32 s3, s3, {LZ1}\nv_add_u32 v34, s3, v9')
    a('s_lshl_b32 s3, s59, 1\nv_add_u32 v16, s3, v16\nv_lshlrev_b32 v16, 8, v16\nv_lshl_add_u32 v16, v7, 3, v16\nv_lshl_add_u32 v35, v8, 30, v16')
    a(f's_lshr_b32 s3, s58, 1\ns_lshl_b32 s4, s46, 1\ns_add_u32 s3, s3, s4\ns_mul_i32 s60, s3, {43*1024}\ns_and_b32 s4, s58, 1\ns_lshl_b32 s5, s4, 7\ns_add_u32 s60, s60, s5\ns_lshl_b32 s5, s47, 10\ns_add_u32 s60, s60, s5\ns_add_u32 s60, s60, {WS_H}')
    a(f's_lshl_b32 s4, s4, 10\ns_add_u32 s3, s3, s4\ns_lshl_b32 s3, s3, 1\nv_lshlrev_b32 v7, 7, v7\nbuffer_load_ushort v36, v7, {sBSP}, s3 offen', tag='bias')

def reduce_stream(e):
    r = Asm()
    T = 16
    for i in range(4): r(f'ds_read_b128 {vr(T+4*i)}, v32 offset:{(e&1)*32768 + 4096*i}')
    r(f'v_xor_b32 v37, {32*e}, v34\nds_read_b32 v37, v37', tag=f'rd{e}')
    r.wait(lgkm=f'rd{e}')
    for c in range(4): r(f'v_add_f32 v{T+c}, v{T+c}, v{T+4+c}\nv_add_f32 v{T+8+c}, v{T+8+c}, v{T+12+c}')
    for c in range(4): r(f'v_add_f32 v{T+c}, v{T+c}, v{T+8+c}')
    r(f'v_permlane32_swap_b32 v{T}, v{T+2}\nv_permlane32_swap_b32 v{T+1}, v{T+3}')
    r(f'v_lshlrev_b32 v{T+4}, 16, v37\nv_and_b32 v{T+5}, 0xffff0000, v37')
    r(f'v_add_f32 v{T}, v{T}, v{T+2}\nv_add_f32 v{T+1}, v{T+1}, v{T+3}\nv_add_f32 v{T}, v{T}, v36\nv_add_f32 v{T+1}, v{T+1}, v36')
    r(f'v_mul_f32 v{T}, v{T}, v{T+4}\nv_mul_f32 v{T+1}, v{T+1}, v{T+5}\nv_cvt_pk_bf16_f32 v38, v{T}, v{T+1}\nv_mov_b32 v39, v38\nv_permlane32_swap_b32 v38, v39')
    r(f's_add_u32 s3, s60, {1024*e}\nbuffer_store_dwordx2 v[38:39], v35, {sWS}, s3 offen sc1')
    return r.L

def gemm2(a):
    for e in range(6):
        if e==5: a('s_cmp_eq_u32 s48, 5\ns_cbranch_scc1 L_p2_tail5\nL_soft_p2_t5:')
        m = Asm()
        acc = ACC + 16*(e&1)
        for step in range(8):
            m.wait(vm=f'b{e}_{step}')
            for tt in range(4):
                m(f'v_mfma_f32_16x16x32_bf16 {vr(acc+4*tt)}, {vr(BR+4*step)}, {vr(AR+4*(step*4+tt))}, {"0" if step==0 else vr(acc+4*tt)}')
            if e<5: b_load(m, e+1, step, f'b{e+1}_{step}')
        if e>0:
            fill = reduce_stream(e-1)
            cnt = [0]
            def pos(k, ins):
                if ins.kind=='mfma':
                    cnt[0]+=1
                    if cnt[0]==1: return 6
                    if cnt[0]>=8: return 2
                return 0
            m.L = interleave(m.L, fill, pos)
        a.extend(m.L)
        for tt in range(4): a(f'ds_write_b128 v33, {vr(acc+4*tt)} offset:{(e&1)*32768 + 1024*tt}')
        a.wait(lgkm=0); a('s_barrier')
        if e==0: stamp(a,4)
        if e==4: stamp(a,5)
    a.extend(reduce_stream(5))
    a('s_branch L_p2_done')
    a('L_p2_tail5:')
    t = reduce_stream(4)
    for i in t:
        if i.tag: i.tag = i.tag+'x'
        if i.wait: i.wait = (i.wait[0], i.wait[1]+'x')
    a.extend(t)
    a('L_p2_done:')

def p2_all(a, multi):
    p2_ids(a)
    a('v_lshlrev_b32 v10, 4, v1')
    if not multi:
        a(f's_cmp_lg_u32 {SW}, 0\ns_cbranch_scc1 L_p2_go')
        a('s_lshr_b32 s3, s47, 2\ns_add_u32 s4, s47, s48\ns_lshr_b32 s4, s4, 2\nv_lshrrev_b32 v4, 4, v1\nv_add_u32 v5, s3, v4\nv_min_u32 v5, s4, v5')
        a('s_lshr_b32 s3, s50, 1\ns_add_u32 s3, s3, 11\nv_mov_b32 v6, s3\nv_cmp_eq_u32 vcc, 3, v4\nv_cndmask_b32 v5, v5, v6, vcc\nv_and_b32 v6, 15, v1\nv_lshlrev_b32 v6, 2, v6\nv_lshl_add_u32 v5, v5, 8, v6')
        a(f's_lshr_b32 s3, s2, 3\ns_and_b32 s3, s3, 3\ns_lshl_b32 s3, s3, 12\ns_add_u32 s5, s3, {WS_F1}')
        poll(a, f'buffer_load_dword v6, v5, {sWS}, s5 offen sc1', [6])
        a('L_p2_go:\ns_barrier')
    fft_loads(a)
    fft_w_loads(a)
    a_setup(a)
    a_dma(a, 0, 'A0'); a_dma(a, 1, 'A1')
    a(f's_add_u32 s3, s47, 1\ns_lshl_b32 s53, s3, 16\ns_lshl_b32 s3, {SW}, 13\ns_add_u32 s53, s53, s3\ns_add_u32 s53, s53, {WS_Z2}')
    a(f's_add_u32 s54, s53, {65536*5}\ns_cmp_eq_u32 s48, 6\ns_cselect_b32 s54, s54, 0x40000000')
    fft_consts(a)
    stamp(a,1)
    fft_body(a)
    stamp(a,2)
    a.wait(vm='A0'); a_read(a, 0, 'ar0'); a.wait(lgkm='ar0'); a_dma(a, 2, 'A2')
    a.wait(vm='A1'); a_read(a, 1, 'ar1'); a.wait(lgkm='ar1'); a_dma(a, 3, 'A3')
    for step in range(8): b_load(a, 0, step, f'b0_{step}')
    z1_loads(a)
    red_setup(a)
    a.wait(vm='A2'); a_read(a, 2, 'ar2')
    a.wait(vm='A3'); a_read(a, 3, 'ar3')
    a.wait(vm=('bias' if multi else 0), lgkm=0); a('s_barrier')
    stamp(a,3)
    if not multi:
        a(f's_cmp_lg_u32 {SW}, 0\ns_cbranch_scc1 L_soft_p2_fu')
        a(f's_lshr_b32 s3, s2, 5\ns_lshl_b32 s3, s3, 8\ns_and_b32 s4, s2, 31\ns_lshl_b32 s4, s4, 2\ns_add_u32 s3, s3, s4\ns_add_u32 s3, s3, {WS_FU}')
        n0 = len(a.L)
        publish(a, 8, 2048, 's3')
        a.L[-1].kind = 'vmem_nc'
        a('L_soft_p2_fu:')
    a('v_lshlrev_b32 v36, 16, v36')
    gemm2(a)
    if not multi:
        a('s_waitcnt vmcnt(0)\ns_barrier')
        a(f's_cmp_lg_u32 {SW}, 0\ns_cbranch_scc1 L_p2_fh')
        a(f's_and_b32 s3, s2, 1\ns_lshl_b32 s3, s3, 2\ns_lshr_b32 s4, s2, 6\ns_add_u32 s3, s3, s4\ns_lshl_b32 s3, s3, 2\ns_lshl_b32 s4, s46, 8\ns_add_u32 s3, s3, s4\ns_add_u32 s3, s3, {WS_FH}')
        publish(a, 1, 0, 's3')
        a('L_p2_fh:')
```

```python
from common import *
LU, LH, LEO, LW = 0, 32768, 77824, 94208
NS = 17

def p3_ids(a):
    a('s_and_b32 s4, s2, 7\ns_lshr_b32 s5, s2, 3\ns_lshr_b32 s46, s4, 1\ns_lshl_b32 s46, s46, 4\ns_and_b32 s3, s5, 15\ns_add_u32 s46, s46, s3')
    a(f's_and_b32 s47, s4, 1\ns_lshl_b32 s47, s47, 1\ns_lshr_b32 s3, s5, 4\ns_add_u32 s47, s47, s3\ns_and_b32 s48, {SW}, 1\ns_bfe_u32 s49, {SW}, 0x10001')
    a('v_and_b32 v10, 31, v1\nv_lshrrev_b32 v11, 5, v1')

def p3_dft(a):
    AR_, AI, ST, EF, UF, G = 64, 80, 96, 112, 128, 32
    a(f's_and_b32 s50, {SW}, 3')
    a(f's_lshl_b32 s3, s46, 15\ns_lshl_b32 s4, s50, 13\ns_add_u32 s51, s3, s4\ns_add_u32 s51, s51, {WS_U}\ns_and_b32 s3, s50, 1\ns_lshl_b32 s3, s3, 3\nv_xor_b32 v4, s3, v1\nv_lshlrev_b32 v4, 4, v4')
    for n in range(8):
        a(f'v_xor_b32 v{5+(n&1)}, {16*n}, v4\ns_add_u32 m0, s4, {LU + 1024*n}\ns_add_u32 s3, s51, {1024*n}\nbuffer_load_dwordx4 v{5+(n&1)}, {sWS}, s3 offen lds', tag=('U' if n==7 else None))
    a(f's_mul_i32 s3, s46, {43*1024}\ns_lshl_b32 s4, s50, 10\ns_add_u32 s51, s3, s4\ns_add_u32 s51, s51, {WS_H}\nv_lshlrev_b32 v4, 4, v1')
    for i in range(11):
        a(f's_add_u32 m0, s4, {LH + 4096*i}\ns_add_u32 s3, s51, {4096*i}')
        if i==10: a('s_cmp_eq_u32 s50, 3\ns_cselect_b32 s3, 0x40000000, s3')
        a(f'buffer_load_dwordx4 v4, {sWS}, s3 offen lds', tag=('H' if i==10 else None))
    a('v_and_b32 v5, 15, v10\nv_xor_b32 v5, v5, v11\nv_lshlrev_b32 v5, 4, v5\nv_lshl_add_u32 v16, v10, 10, v5')
    for c in range(1,8): a(f'v_xor_b32 v{16+c}, {32*c}, v16')
    a('s_lshl_b32 s3, s47, 7\ns_lshl_b32 s4, s48, 6\ns_add_u32 s3, s3, s4\ns_add_u32 s3, s3, 1\nv_lshl_add_u32 v14, v10, 1, s3')
    a('v_lshlrev_b32 v5, 3, v11\nv_add_u32 v5, 1, v5\nv_mul_u32_u24 v5, v5, v14\ns_lshl_b32 s3, s49, 8\nv_subrev_u32 v5, s3, v5\nv_lshlrev_b32 v7, 4, v14')
    for i in range(8):
        a(f'v_and_b32 v8, 1023, v5\nv_cvt_f32_u32 v8, v8\nv_mul_f32 v8, {hx(1/1024)}, v8\nv_cos_f32 v{ST+i}, v8')
        a(f'v_sub_u32 v9, v5, v7\nv_and_b32 v9, 1023, v9\nv_cvt_f32_u32 v9, v9\nv_mul_f32 v9, {hx(1/1024)}, v9\nv_cos_f32 v{ST+8+i}, v9')
        if i<7: a('v_add_u32 v5, v5, v14')
    a(f'v_and_b32 v8, 63, v14\nv_cvt_f32_u32 v8, v8\nv_mul_f32 v8, {hx(1/64)}, v8\nv_cos_f32 v15, v8\nv_add_f32 v15, v15, v15')
    a('v_lshlrev_b32 v6, 6, v10\nv_add_u32 v6, s46, v6\nv_lshlrev_b32 v5, 2, v11\nv_mul_u32_u24 v5, v5, v6\ns_lshl_b32 s3, s49, 9\nv_add_u32 v5, s3, v5')
    for u in range(2):
        for jj in range(4):
            for e in range(2):
                i = 2*jj+e; po = 8*(2*u+(i>>2)) + (i&3)
                a(f'v_mad_u32_u24 v8, v6, {po}, v5\nv_and_b32 v8, 2047, v8\nv_cvt_f32_u32 v8, v8\nv_mul_f32 v8, {hx(1/2048)}, v8\nv_cos_f32 v{24+e}, v8\nv_sin_f32 v{26+e}, v8')
            a(f'v_cvt_pk_bf16_f32 v{G+4*u+jj}, v24, v25\nv_cvt_pk_bf16_f32 v{G+8+4*u+jj}, -v26, -v27')
    def rd(j):
        kg, u = j>>1, j&1; b = UF + 8*(j&3)
        c = (kg&1)*4 + u
        a(f'ds_read_b128 {vr(b)}, v{16+c} offset:{LU + 256*(kg>>1)}\nds_read_b128 {vr(b+4)}, v{16+c+2} offset:{LU + 256*(kg>>1)}', tag=f'u{j}')
    stamp(a,1)
    a.wait(vm='U'); a('s_barrier'); stamp(a,2)
    rd(0); rd(1)
    cur, prev = 0, 8
    for j in range(16):
        if j==8: stamp(a,3); a.wait(vm='H'); a('s_barrier'); stamp(a,4)
        if j+2 < 16: rd(j+2)
        f = EF + 4*(j&1); b = UF + 8*(j&3)
        for jj in range(4): a(f'v_cvt_pk_bf16_f32 v{f+jj}, v{ST+cur+2*jj}, v{ST+cur+2*jj+1}')
        a.wait(lgkm=f'u{j}')
        a(f'v_mfma_f32_32x32x16_bf16 {vr(AR_,16)}, {vr(b)}, {vr(f)}, {"0" if j==0 else vr(AR_,16)}')
        if j<15:
            for i in range(4): a(f'v_fma_f32 v{ST+prev+i}, v15, v{ST+cur+i}, -v{ST+prev+i}')
        a(f'v_mfma_f32_32x32x16_bf16 {vr(AI,16)}, {vr(b+4)}, {vr(f)}, {"0" if j==0 else vr(AI,16)}')
        if j<15:
            for i in range(4,8): a(f'v_fma_f32 v{ST+prev+i}, v15, v{ST+cur+i}, -v{ST+prev+i}')
        cur, prev = prev, cur
    for u in range(2):
        for jj in range(4): a(f'v_cvt_pk_bf16_f32 v{UF+4*u+jj}, v{AR_+8*u+2*jj}, v{AR_+8*u+2*jj+1}')
    for u in range(2):
        for jj in range(4): a(f'v_cvt_pk_bf16_f32 v{UF+8+4*u+jj}, v{AI+8*u+2*jj}, v{AI+8*u+2*jj+1}')
    for n in range(4):
        a(f'v_mfma_f32_32x32x16_bf16 {vr(ST,16)}, {vr(G+4*n)}, {vr(UF+4*n)}, {"0" if n==0 else vr(ST,16)}')
    a(f's_lshl_b32 s3, s49, 13\ns_lshl_b32 s4, s48, 12\ns_add_u32 s3, s3, s4\ns_add_u32 s3, s3, {LEO}\nv_add_u32 v4, s3, v4')
    for g in range(4): a(f'ds_write_b128 v4, {vr(ST+4*g)} offset:{1024*g}')
    a.wait(lgkm=0); a('s_barrier')

def p3_gemm(a):
    WO, ACC, HF, XV, EO = 80, 64, 48, 32, 16
    a('s_lshl_b32 s3, s47, 6\ns_lshl_b32 s4, s48, 5\ns_add_u32 s3, s3, s4\ns_sub_u32 s4, 480, s3\ns_cmp_eq_u32 s49, 0\ns_cselect_b32 s50, s3, s4')
    a(f's_mul_i32 s51, {SW}, {NS*1024}\ns_add_u32 s51, s51, {LW}\ns_lshl_b32 s52, s50, 1')
    a('v_lshrrev_b32 v5, 2, v1\nv_and_b32 v6, 3, v1\nv_lshlrev_b32 v6, 4, v6\nv_lshl_add_u32 v4, v5, 10, v6')
    def dma(st):
        a(f's_add_u32 m0, s51, {(st%NS)*1024}\ns_add_u32 s3, s52, {st*16384}\nbuffer_load_dwordx4 v4, {sWOUT}, s3 offen lds', tag=f'wo{st}')
    for st in range(NS): dma(st)
    a('v_lshlrev_b32 v7, 18, v11\nv_lshl_add_u32 v7, v10, 1, v7\ns_lshl_b32 s3, s46, 10\ns_add_u32 s53, s3, s52')
    for v in range(16):
        a(f's_add_u32 s3, s53, {(8*(v>>2)+(v&3))*65536}\nbuffer_load_ushort v{XV+v}, v7, {sX}, s3 offen', tag=('xv' if v==15 else None))
    a('v_and_b32 v5, 15, v1\nv_lshrrev_b32 v6, 2, v5\nv_lshl_add_u32 v6, v11, 3, v6\nv_lshlrev_b32 v8, 6, v6\nv_bfe_u32 v6, v1, 4, 1\nv_lshl_add_u32 v8, v6, 5, v8\nv_and_b32 v6, 3, v1\nv_lshl_add_u32 v8, v6, 3, v8\nv_add_u32 v8, s51, v8')
    a(f'v_lshlrev_b32 v9, 9, v11\nv_lshl_add_u32 v9, v10, 3, v9\nv_add_u32 v9, {LH}, v9')
    a(f'v_sub_u32 v5, 31, v10\ns_cmp_eq_u32 s49, 0\ns_cselect_b64 vcc, -1, 0\nv_cndmask_b32 v5, v5, v10, vcc\nv_lshl_add_u32 v5, v11, 5, v5\ns_lshl_b32 s3, s48, 12\ns_add_u32 s3, s3, {LEO}\nv_lshl_add_u32 v12, v5, 4, s3')
    a('s_cmp_eq_u32 s49, 0\ns_cselect_b32 s54, 1.0, -1.0')
    a('s_barrier')
    for st in range(43):
        a.wait(vm=f'wo{st}')
        a(f'ds_read_b64_tr_b16 {vr(WO+4*st,2)}, v8 offset:{(st%NS)*1024}\nds_read_b64_tr_b16 {vr(WO+4*st+2,2)}, v8 offset:{(st%NS)*1024+256}', tag=f'wr{st}')
        if st>=1 and st-1+NS < 43:
            a.wait(lgkm=f'wr{st-1}'); dma(st-1+NS)
    stamp(a,3)
    a('s_barrier'); stamp(a,4)
    def rd(st):
        f = HF+4*(st&3)
        a(f'ds_read_b64 {vr(f,2)}, v9 offset:{st*1024}\nds_read_b64 {vr(f+2,2)}, v9 offset:{st*1024+256}', tag=f'h{st}')
    for st in range(3): rd(st)
    for st in range(43):
        if st+3 < 43: rd(st+3)
        a.wait(lgkm=f'h{st}')
        a(f'v_mfma_f32_32x32x16_bf16 {vr(ACC,16)}, {vr(HF+4*(st&3))}, {vr(WO+4*st)}, {"0" if st==0 else vr(ACC,16)}')
    stamp(a,5)
    a.wait(vm='xv')
    for v in range(16): a(f'v_lshlrev_b32 v{XV+v}, 16, v{XV+v}')
    a('s_barrier')
    for g in range(4): a(f'ds_read_b128 {vr(EO+4*g)}, v12 offset:{1024*g}\nds_read_b128 {vr(HF+4*g)}, v12 offset:{8192+1024*g}', tag=f'eo{g}')
    stamp(a,6)
    T = 80
    for g in range(4):
        R = range(4*g, 4*g+4)
        for v in R: a(f'v_mul_f32 v{T+v}, {hx(-1.4426950408889634)}, v{ACC+v}')
        for v in R: a(f'v_exp_f32 v{T+v}, v{T+v}')
        for v in R: a(f'v_add_f32 v{T+v}, 1.0, v{T+v}')
        for v in R: a(f'v_rcp_f32 v{T+v}, v{T+v}')
        a.wait(lgkm=f'eo{g}')
        for v in R: a(f'v_fma_f32 v{EO+v}, s54, v{HF+v}, v{EO+v}')
        for v in R: a(f'v_mul_f32 v{T+v}, v{T+v}, v{ACC+v}')
        for v in R: a(f'v_fma_f32 v{XV+v}, v{EO+v}, v{T+v}, v{XV+v}')
        for v in (4*g, 4*g+2):
            a(f'v_cvt_pk_bf16_f32 v{T+v}, v{XV+v}, v{XV+v+1}')
            a(f's_add_u32 s3, s53, {(8*(v>>2)+(v&3))*65536}\nbuffer_store_short v{T+v}, v7, {sOUT}, s3 offen')
            a(f's_add_u32 s3, s53, {(8*(v>>2)+(v&3)+1)*65536}\nbuffer_store_short_d16_hi v{T+v}, v7, {sOUT}, s3 offen')

def p3_all(a, multi):
    p3_ids(a)
    if not multi:
        a(f's_cmp_lg_u32 {SW}, 0\ns_cbranch_scc1 L_p3_go')
        a(f'v_lshrrev_b32 v4, 3, v1\nv_lshlrev_b32 v4, 8, v4\nv_and_b32 v5, 7, v1\nv_lshl_add_u32 v4, v5, 4, v4\ns_and_b32 s3, s2, 7\ns_lshl_b32 s3, s3, 11\ns_add_u32 s5, s3, {WS_FU}')
        poll(a, f'buffer_load_dwordx4 v[12:15], v4, {sWS}, s5 offen sc1', [12,13,14,15])
        a(f's_cmp_lg_u32 s2, 0\ns_cbranch_scc1 L_p3_noep\ns_mov_b32 s3, {WS_EPOCH}')
        publish(a, 1, 0, 's3')
        a('L_p3_noep:')
        a(f'v_lshlrev_b32 v4, 2, v5\ns_lshr_b32 s3, s46, 1\ns_lshl_b32 s3, s3, 8\ns_add_u32 s5, s3, {WS_FH}')
        poll(a, f'buffer_load_dword v6, v4, {sWS}, s5 offen sc1', [6])
        a('L_p3_go:\ns_barrier')
    a(f's_cmp_lt_u32 {SW}, 4\ns_cbranch_scc1 L_p3_gemm')
    p3_dft(a)
    a('s_branch L_p3_done\nL_p3_gemm:')
    p3_gemm(a)
    a('L_p3_done:')
```

```python
import sys
from common import *
import p1
def build_multi(nk=3):
    a = Asm()
    heads = []
    names = ['k1_kernel','k2_kernel','k3_kernel'][:nk]
    prologue(a, 'k1_kernel', 'L_k1_end', 'L_k1_exit')
    p1.p1_dispatch(a, True, 'L_k1_fin')
    a('L_k1_fin:'); stamp_flush(a, 0)
    a('L_k1_exit:\ns_endpgm\nL_k1_end:')
    if nk>=2:
        import p2
        prologue(a, 'k2_kernel', 'L_k2_end', 'L_k2_exit')
        p2.p2_all(a, True); stamp_flush(a, 1)
        a('L_k2_exit:\ns_endpgm\nL_k2_end:')
    if nk>=3:
        import p3
        prologue(a, 'k3_kernel', 'L_k3_end', 'L_k3_exit')
        p3.p3_all(a, True); stamp_flush(a, 2)
        a('L_k3_exit:\ns_endpgm\nL_k3_end:')
    body, added = render(a.L)
    hdr = ''.join(f'; @launch kernel={n} grid=(256,1,1) block=(512,1,1) lds=163840\n' for n in names)
    ref = open('recurrent_scan__spectral_gfnet__mixer_gmlp__prompt.s.ref').read().split('\n')
    top = ''.join(l+'\n' for l in ref[:12])
    txt = top + hdr + '.amdgcn_target "amdgcn-amd-amdhsa--gfx950"\n.text\n' + body + '.section .rodata,"a"\n' + ''.join(KD.format(name=n) for n in names)
    return txt, added, len(a.L)
KN = 'recurrent_scan__spectral_gfnet__mixer_gmlp__prompt_kernel'
def build_persist():
    import p2, p3
    a = Asm()
    prologue(a, KN, 'L_end', 'L_exit', persist=True)
    p1.p1_dispatch(a, False, 'L_p1_fin')
    a('L_p1_fin:')
    stamp_flush(a, 0); stamp(a, 0); stamp_clear(a)
    p2.p2_all(a, False)
    stamp_flush(a, 1); stamp(a, 0); stamp_clear(a)
    p3.p3_all(a, False)
    stamp_flush(a, 2)
    a('L_exit:\ns_endpgm\nL_end:')
    body, added = render(a.L)
    ref = open('recurrent_scan__spectral_gfnet__mixer_gmlp__prompt.s.ref').read().split('\n')
    top = ''.join(l+'\n' for l in ref[:12])
    txt = top + '; @launch grid=(256,1,1) block=(512,1,1) lds=163840\n.amdgcn_target "amdgcn-amd-amdhsa--gfx950"\n.text\n' + body + '.section .rodata,"a"\n' + KD.format(name=KN)
    return txt, added, len(a.L)
if __name__ == '__main__':
    nk = sys.argv[2] if len(sys.argv)>2 else 'p'
    txt, added, n = build_persist() if nk=='p' else build_multi(int(nk))
    open(sys.argv[1],'w').write(txt)
    print('instrs', n, 'nop states added', added)
```
